```python
import torch

def _softmax(x, axis=-1):
    return torch.softmax(x, dim=axis)
def _gelu(x):
    return torch.nn.functional.gelu(x, approximate="tanh")
def _silu(x):
    return torch.nn.functional.silu(x)
def _sigmoid(x):
    return torch.sigmoid(x)
def _layernorm(x, axis=-1, eps=1e-5):
    m = x.mean(dim=axis, keepdim=True)
    v = x.var(dim=axis, keepdim=True, unbiased=False)
    return (x - m) / torch.sqrt(v + eps)
def _scatter_add(tgt, idx, src, axis=0):
    return tgt.clone().index_add_(axis, idx, src)
def _segment_sum(src, seg, n):
    out = torch.zeros((n,) + src.shape[1:], dtype=src.dtype)
    return out.index_add_(0, seg, src)
def _pad(x, pw):
    flat = tuple(v for pair in reversed(pw) for v in pair)
    return torch.nn.functional.pad(x, flat)

kernel_name = 'parallel_sum__linear_attn_block__dense_activation_silu__prompt'

def setup_inputs():

    _w = (lambda a: (lambda t: t.to(torch.bfloat16) if t.is_floating_point() else t)(torch.as_tensor(a)))
    def _A_setup():
        B, S, D = 1, 2048, 640
        return {
            "x": _w((lambda *s: torch.randn(*s, dtype=torch.bfloat16) * 0.05)(B, S, D)),
            "wqkv": _w((lambda *s: torch.randn(*s, dtype=torch.bfloat16) * 0.1)(D, 3 * D)),
            "wo": _w((lambda *s: torch.randn(*s, dtype=torch.bfloat16) * 0.05)(D, D)),
        }
    _A_in = _A_setup()

    def _B_setup():
        B, S, D, F = 1, 2048, 640, 1536
        return {
            "x": _w((lambda *s: torch.randn(*s, dtype=torch.bfloat16) * 0.05)(B, S, D)),
            "w1": _w((lambda *s: torch.randn(*s, dtype=torch.bfloat16) * 0.8)(D, F) * (D ** -0.5)),
            "w2": _w((lambda *s: torch.randn(*s, dtype=torch.bfloat16) * 0.1)(F, D) * (F ** -0.5)),
        }
    _B_in = _B_setup()

    return {
        "A_x": _A_in["x"],
        "A_wqkv": _A_in["wqkv"],
        "A_wo": _A_in["wo"],
        "B_x": _B_in["x"],
        "B_w1": _B_in["w1"],
        "B_w2": _B_in["w2"],
    }

def reference(A_x, A_wqkv, A_wo, B_x, B_w1, B_w2):
    def _A_ref(x, wqkv, wo):
        B, S, D = x.shape
        H = 32; Dh = D // H
        qkv = (lambda x, *d: x.permute(*d))((x @ wqkv).reshape(B, S, 3, H, Dh), 2, 0, 3, 1, 4)
        q, k, v = qkv[0], qkv[1], qkv[2]
        phi = lambda t: torch.where(t > 0, t + 1, torch.exp(t)) + 1e-6
        pq, pk = phi(q), phi(k)
        kv = torch.einsum("bhsd,bhse->bhde", pk, v)
        z = torch.einsum("bhsd->bhd", pk)
        num = torch.einsum("bhqd,bhde->bhqe", pq, kv)
        den = torch.einsum("bhqd,bhd->bhq", pq, z)[..., None] + 1e-6
        o = num / den
        return (lambda x, *d: x.permute(*d))(o, 0, 2, 1, 3).reshape(B, S, D) @ wo

    def _B_ref(x, w1, w2):
        h = torch.einsum("bsd,df->bsf", x, w1)
        h = _silu(h)
        out = torch.einsum("bsf,fd->bsd", h, w2)
        return out

    x = A_x
    xn = _layernorm(x, axis=-1)
    return x + _A_ref(xn, A_wqkv, A_wo) + _B_ref(xn, B_w1, B_w2)
```

```python
import re
import struct


def f2u(x):
    return struct.unpack("<I", struct.pack("<f", x))[0]


def vr(a, n=1):
    return "v%d" % a if n == 1 else "v[%d:%d]" % (a, a + n - 1)


def sr(a, n=1):
    return "s%d" % a if n == 1 else "s[%d:%d]" % (a, a + n - 1)


_REG = re.compile(r"^-?(?:abs\()?\|?([vsa])(?:(\d+)|\[(\d+):(\d+)\])\|?\)?$")
TRANS = re.compile(r"v_(exp|log|rcp|rsq|sqrt|sin|cos)_f32")


def regs_of(tok):
    tok = tok.strip()
    if tok == "vcc":
        return {("s", 106), ("s", 107)}
    if tok == "exec":
        return {("s", 126), ("s", 127)}
    if tok == "m0":
        return {("s", 124)}
    m = _REG.match(tok)
    if not m:
        return set()
    k = m.group(1)
    if m.group(2) is not None:
        return {(k, int(m.group(2)))}
    return {(k, i) for i in range(int(m.group(3)), int(m.group(4)) + 1)}


class Ins:
    __slots__ = ("text", "mn", "ops", "label", "defs", "uses", "kind", "srcc", "stdata", "addr_s", "ab")

    def __init__(self, text):
        self.text = text
        self.label = None
        self.defs = set()
        self.uses = set()
        self.srcc = set()
        self.ab = set()
        self.stdata = set()
        self.addr_s = set()
        t = text.split(";")[0].strip()
        if t.endswith(":"):
            self.label = t[:-1]
            self.mn = ""
            self.kind = "label"
            return
        if t.startswith(".") or not t:
            self.mn = ""
            self.kind = "dir"
            return
        parts = t.split(None, 1)
        self.mn = mn = parts[0]
        rest = parts[1] if len(parts) > 1 else ""
        rest = re.sub(r"\s\w+:\[[^\]]*\]", "", rest)
        ops = [o.strip() for o in rest.split(",")] if rest else []
        if ops:
            last = ops[-1].split()
            mods = last[1:]
            ops[-1] = last[0] if last else ""
        else:
            mods = []
        self.ops = ops
        R = [regs_of(o) for o in ops]
        if mn.startswith("v_mfma"):
            self.kind = "mfma"
            self.defs = R[0]
            self.ab = R[1] | R[2]
            self.srcc = R[3]
            self.uses = self.ab | self.srcc
        elif mn.startswith("v_"):
            self.kind = "valu"
            if mn.startswith("v_cmp"):
                self.defs = R[0]
                self.uses = set().union(*R[1:])
            elif mn.startswith("v_permlane") and "swap" in mn:
                self.defs = R[0] | R[1]
                self.uses = R[0] | R[1]
            else:
                self.defs = set(R[0])
                self.uses = set().union(*R[1:]) if len(R) > 1 else set()
                if mn.startswith(("v_add_co", "v_sub_co", "v_addc_co")):
                    self.defs |= R[1]
                if mn.startswith(("v_fmac", "v_dot2c", "v_writelane")) or "_dpp" in mn:
                    self.uses |= R[0]
                if mn.startswith("v_cndmask") and len(ops) == 3:
                    self.uses |= regs_of("vcc")
        elif mn.startswith("ds_"):
            self.kind = "ds"
            if mn.startswith(("ds_read", "ds_swizzle", "ds_bpermute")) or "_rtn_" in mn:
                self.defs = R[0]
                self.uses = set().union(*R[1:])
            else:
                self.uses = set().union(*R)
        elif mn.startswith(("buffer_", "global_")):
            self.kind = "vmem"
            is_lds = "lds" in mods or "load_lds" in mn
            allr = set().union(*R) if R else set()
            self.addr_s = {r for r in allr if r[0] == "s"}
            if is_lds:
                self.uses = allr | {("s", 124)}
                self.kind = "vmem_lds"
            elif "load" in mn:
                self.defs = R[0]
                self.uses = set().union(*R[1:])
            else:
                self.uses = allr
                if "x4" in mn or "x3" in mn:
                    self.stdata = R[0] if mn.startswith("buffer_") else R[1]
        elif mn.startswith("s_"):
            self.kind = "salu"
            nodef = ("s_cmp", "s_waitcnt", "s_barrier", "s_nop", "s_branch", "s_cbranch", "s_endpgm", "s_sleep",
                     "s_setprio", "s_bitcmp")
            if not mn.startswith(nodef) and R:
                self.defs = R[0]
                self.uses = set().union(*R[1:]) if len(R) > 1 else set()
            else:
                self.uses = set().union(*R) if R else set()
        else:
            raise ValueError("unknown instruction: " + text)

    def states(self):
        if self.kind in ("label", "dir"):
            return 0
        if self.mn == "s_nop":
            return int(self.ops[0], 0) + 1
        return 1


def mfma_passes(mn):
    return 8 if "32x32" in mn else 4


def need(p, c):
    n = 0
    vdef = {r for r in p.defs if r[0] in "va"}
    sdef = {r for r in p.defs if r[0] == "s"}
    if p.kind == "valu":
        if c.kind == "mfma" and vdef & c.uses:
            n = max(n, 2)
        if c.kind == "valu":
            if vdef & c.uses:
                if c.mn.startswith(("v_readlane", "v_readfirstlane")):
                    n = max(n, 1)
                if "_dpp" in c.mn or c.mn.startswith("v_permlane"):
                    n = max(n, 2)
                if TRANS.match(p.mn) and not TRANS.match(c.mn):
                    n = max(n, 1)
            if p.mn.startswith("v_dot") and (vdef & (c.uses | c.defs)):
                same_acc = c.mn == p.mn and not (vdef & set().union(*[regs_of(o) for o in c.ops[1:3]]))
                if not same_acc:
                    n = max(n, 3)
            if sdef & c.uses:
                n = max(n, 4 if c.mn.startswith(("v_readlane", "v_writelane")) else 2)
        if p.mn.startswith("v_dot") and c.kind in ("ds", "vmem", "vmem_lds", "mfma") and vdef & c.uses:
            n = max(n, 3)
        if c.kind in ("vmem", "vmem_lds") and sdef & c.uses:
            n = max(n, 5)
        if c.kind == "salu" and sdef & c.uses:
            n = max(n, 1)
    if p.kind == "mfma":
        ps = mfma_passes(p.mn)
        big = {4: 8, 8: 12}[ps]
        if c.kind == "mfma":
            if p.defs & c.ab:
                n = max(n, big)
            if p.defs & c.srcc and not (p.defs == c.srcc and mfma_passes(c.mn) == ps):
                n = max(n, {4: 6, 8: 10}[ps])
        elif c.kind in ("valu", "ds", "vmem", "vmem_lds"):
            if p.defs & (c.uses | c.defs):
                n = max(n, big)
            if c.kind == "valu" and p.srcc & c.defs:
                n = max(n, {4: 3, 8: 7}[ps])
    if p.kind == "salu" and ("s", 124) in p.defs and c.kind == "vmem_lds":
        n = max(n, 1)
    if p.stdata and p.stdata & c.defs:
        n = max(n, 2)
    return n


MAXD = 13


def fix_hazards(lines):
    ins = [Ins(l) for l in lines]
    while True:
        labels = {x.label: i for i, x in enumerate(ins) if x.label}
        jumps = {}
        for i, x in enumerate(ins):
            if x.mn.startswith(("s_branch", "s_cbranch")):
                jumps.setdefault(labels[x.ops[0]], []).append(i)

        def preds(i):
            out = []
            if i > 0 and ins[i - 1].mn not in ("s_branch", "s_endpgm"):
                out.append(i - 1)
            out += jumps.get(i, [])
            return out

        changed = False
        new = []
        for i, c in enumerate(ins):
            if c.kind not in ("label", "dir") and c.mn != "s_nop":
                short = 0
                stack = [(j, 0) for j in preds(i)]
                seen = {}
                while stack:
                    j, d = stack.pop()
                    if d >= MAXD or seen.get(j, 99) <= d:
                        continue
                    seen[j] = d
                    p = ins[j]
                    if p.kind not in ("label", "dir"):
                        short = max(short, need(p, c) - d)
                    stack += [(k, d + p.states()) for k in preds(j)]
                if short > 0:
                    new.append(Ins("s_nop %d" % (short - 1)))
                    changed = True
            new.append(c)
        ins = new
        if not changed:
            return [x.text for x in ins]


class Asm:
    def __init__(self):
        self.L = []
        self.nlab = 0

    def __call__(self, fmt, *a):
        t = fmt % a if a else fmt
        for l in t.split("\n"):
            l = l.strip()
            if l:
                self.L.append(l)

    def label(self, name):
        self.L.append(name + ":")

    def newlabel(self, stem):
        self.nlab += 1
        return "L_%s_%d" % (stem, self.nlab)


class VmTrack:
    def __init__(self, e):
        self.e = e
        self.q = []

    def issue(self, tag, fmt, *a):
        self.e(fmt, *a)
        self.q.append(tag)

    def wait(self, tag):
        idx = [i for i, t in enumerate(self.q) if t == tag]
        if not idx:
            return
        n = len(self.q) - 1 - idx[-1]
        assert n <= 63, n
        self.e("s_waitcnt vmcnt(%d)", n)
        self.q = self.q[idx[-1] + 1:]

    def wait_all(self):
        self.e("s_waitcnt vmcnt(0)")
        self.q = []


def interleave(main, fill, start=0, every=1):
    out = []
    fi = 0
    for i, m in enumerate(main):
        out.append(m)
        if i >= start and (i - start) % every == 0 and fi < len(fill):
            out.append(fill[fi])
            fi += 1
    out += fill[fi:]
    return out
```

```python
import sys
from asmlib import Asm, VmTrack, fix_hazards, interleave, f2u, vr, sr

KNAME = "parallel_sum__linear_attn_block__dense_activation_silu__prompt_kernel"

RT_STRIDE = 68 * 1024
WS_STATS = 0x880000
WS_CSUM = 0x888000
CSUM_Q = 13824
WS_KVP = 0x896000
KVP_RB = 3456
WS_FLAGS = 0x902000
WS_STAMP = 0xA00000
WS_SIZE = 0xB00000
OOB = 0x40000000
SPIN_MAX = 1 << 17

X, W1, W2, WO, WS, OUT, DBG, TMPD = 8, 12, 16, 20, 24, 28, 32, 4
PX, PQKV, PWO, PW1, PW2, POUT, PDBG, PWS = 36, 38, 40, 44, 46, 48, 50, 52
sWAVE, sRB, sGRP, sC16, sP, sB_, sCBG, sRT0, sKT = 54, 55, 56, 57, 58, 59, 60, 61, 62
sW, sI, sT0, sT1, sT2, sT3 = 63, 3, 64, 65, 66, 67
sSTAMP = 84
LOG2E = 1.4426950408889634


class Role:
    pass


F = Role()
F.name, F.slot, F.scr, F.nct = "F", 40960, 151552, 6
F.rt, F.aslot, F.xo, F.bbase, F.nb = 6, 24576, 73728, 86016, 4
F.bidx = lambda n: n % 4
Q = Role()
Q.name, Q.slot, Q.scr, Q.nct = "Q", 49152, 147456, 8
Q.rt, Q.aslot, Q.xo, Q.bbase, Q.nb = 4, 16384, 49152, 65536, 5
Q.bidx = lambda n: 4 - n % 5
Q.scat, Q.kvsum = 49152, 57344
for r_ in (F, Q):
    r_.svc, r_.svc2, r_.st, r_.cs = r_.scr, r_.scr + 4096, r_.scr + 4608, r_.scr + 6656


def slot_of(t):
    return (9 - t) % 3


class Gen:
    def __init__(self, stamps=False):
        self.e = Asm()
        self.stamps = stamps

    def srd(self, d, p, size):
        self.e("s_mov_b32 s%d, s%d\ns_mov_b32 s%d, s%d\ns_mov_b32 s%d, 0x%x\ns_mov_b32 s%d, 0x20000",
               d, p, d + 1, p + 1, d + 2, size, d + 3)

    def stamp(self, k):
        if self.stamps:
            self.e("s_memrealtime s[68:69]\ns_waitcnt lgkmcnt(0)\ns_mov_b32 s%d, s68", sSTAMP + k)

    def stamp_flush(self):
        if not self.stamps:
            return
        e = self.e
        e("s_lshl_b32 s64, s2, 3\ns_add_u32 s64, s64, s%d\ns_lshl_b32 s64, s64, 6\ns_add_u32 s64, s64, 0x%x", sWAVE, WS_STAMP)
        e("v_mov_b32 v1, 0")
        for k in range(16):
            e("v_writelane_b32 v1, s%d, %d", sSTAMP + k, k)
        e("v_lshlrev_b32 v2, 2, v0\ns_mov_b64 exec, 0xffff")
        e("buffer_store_dword v1, v2, s[%d:%d], s64 offen", WS, WS + 3)
        e("s_mov_b64 exec, -1")

    def swz128(self, dst, tmp, stride):
        e = self.e
        e("v_lshrrev_b32 v%d, 4, v0\nv_lshlrev_b32 v%d, 1, v%d\nv_xor_b32 v%d, v%d, v0\nv_and_b32 v%d, 7, v%d",
          tmp, tmp, tmp, tmp, tmp, tmp, tmp)
        e("v_lshlrev_b32 v%d, 4, v%d\nv_lshrrev_b32 v%d, 3, v0\nv_mul_u32_u24 v%d, %d, v%d\nv_add_u32 v%d, v%d, v%d",
          tmp, tmp, dst, dst, stride, dst, dst, dst, tmp)

    def spin(self, vm, vdst, vaddr, srd, want, first_issued):
        e = self.e
        ok, again = e.newlabel("ok"), e.newlabel("spin")
        if first_issued:
            vm.wait(first_issued)
            e("v_cmp_eq_u32 vcc, %d, v%d\ns_cmp_eq_u64 vcc, -1\ns_cbranch_scc1 %s", want, vdst, ok)
        e("s_mov_b32 s%d, %d", sT3, SPIN_MAX)
        e.label(again)
        e("buffer_load_dword v%d, v%d, s[%d:%d], 0 offen sc1", vdst, vaddr, srd, srd + 3)
        e("s_waitcnt vmcnt(0)")
        e("v_cmp_eq_u32 vcc, %d, v%d\ns_cmp_eq_u64 vcc, -1\ns_cbranch_scc1 %s", want, vdst, ok)
        e("s_sleep 1\ns_sub_u32 s%d, s%d, 1\ns_cmp_lg_u32 s%d, 0\ns_cbranch_scc1 %s", sT3, sT3, sT3, again)
        e.label(ok)
        if not first_issued:
            vm.q = []

    def entry(self):
        e = self.e
        e("s_cmp_ge_u32 s2, 256\ns_cbranch_scc1 L_end")
        e("s_load_dwordx16 s[36:51], s[0:1], 0\ns_load_dwordx2 s[52:53], s[0:1], 64")
        e("v_lshrrev_b32 v1, 6, v0\nv_and_b32 v0, 63, v0\nv_readfirstlane_b32 s%d, v1", sWAVE)
        e("s_lshr_b32 s%d, s2, 3", sI)
        e("s_bfe_u32 s%d, s2, 0x20001\ns_and_b32 s%d, s2, 1", sP, sB_)
        e("s_and_b32 s64, s%d, 3\ns_lshl_b32 s%d, s%d, 2\ns_add_u32 s%d, s%d, s64", sI, sRB, sP, sRB, sRB)
        e("s_lshr_b32 s65, s%d, 2\ns_lshl_b32 s%d, s%d, 3\ns_add_u32 s%d, s%d, s65", sI, sC16, sB_, sC16, sC16)
        e("s_lshr_b32 s66, s%d, 3\ns_lshl_b32 s%d, s%d, 2\ns_add_u32 s%d, s%d, s66", sI, sGRP, sB_, sGRP, sGRP)
        e("s_mul_i32 s67, s64, 3\ns_add_u32 s%d, s%d, s67\ns_add_u32 s%d, s%d, s%d", sKT, sC16, sKT, sKT, sP)
        for _ in range(2):
            e("s_sub_u32 s67, s%d, 10\ns_cmp_ge_u32 s%d, 10\ns_cselect_b32 s%d, s67, s%d", sKT, sKT, sKT, sKT)
        e("s_and_b32 s%d, s%d, 3", sW, sWAVE)
        e("s_lshl_b32 s66, s66, 2\ns_add_u32 s70, s66, s64")
        self.stamp(0)
        e("s_bitcmp1_b32 s%d, 2\ns_cbranch_scc1 L_role_Q", sI)

    def phase2_ids(self, r):
        e = self.e
        if r is F:
            e("s_lshr_b32 s64, s70, 2\ns_and_b32 s65, s70, 3")
            e("s_sub_u32 s66, s70, 12\ns_lshr_b32 s67, s66, 1\ns_add_u32 s67, s67, 3\ns_and_b32 s66, s66, 1")
            e("s_cmp_ge_u32 s70, 12\ns_cselect_b32 s64, s67, s64\ns_cselect_b32 s65, s66, s65\ns_mul_i32 s65, s65, 6")
        else:
            e("s_lshr_b32 s64, s70, 1\ns_and_b32 s65, s70, 1\ns_add_u32 s65, s65, 6")
            e("s_sub_u32 s66, s70, 3\ns_sub_u32 s67, s70, 8\ns_cmp_ge_u32 s70, 11\ns_cselect_b32 s66, s67, s66\ns_cselect_b32 s67, 4, 3")
            e("s_cmp_ge_u32 s70, 6\ns_cselect_b32 s64, s67, s64\ns_cselect_b32 s65, s66, s65\ns_lshl_b32 s65, s65, 2")
        e("s_mul_i32 s%d, s%d, 5\ns_add_u32 s%d, s%d, s64", sCBG, sB_, sCBG, sCBG)
        e("s_lshl_b32 s%d, s%d, 5\ns_add_u32 s%d, s%d, s65", sRT0, sP, sRT0, sRT0)
        e("s_mul_i32 s66, s65, 3\ns_lshr_b32 s66, s66, 3\ns_mul_i32 s67, s%d, 5\ns_add_u32 s71, s66, s67", sCBG)
        e("s_mul_i32 s66, s71, 43\ns_lshr_b32 s66, s66, 9\ns_mul_i32 s66, s66, 12\ns_sub_u32 s71, s71, s66")
        e("s_and_b32 s72, s71, 3")

    def loader(self, r):
        e = self.e
        vm = VmTrack(e)
        vA, vB, vB2, vBX, vL16, vT, vU, vPOLL, vHF, vOF, vKF = 2, 3, 4, 5, 6, 7, 8, 9, 10, 11, 12
        vCSA, vL4, vKVA = 13, 14, 15
        sA, sBo, sW1K, sWB = 73, 74, 75, 76
        sTA, sTB, sAT, sBT, sBTo = 77, 78, 79, 80, 81
        EXB = 82
        e.label("L_loader_" + r.name)
        e("s_and_b32 s64, s%d, 1\ns_lshl_b32 s64, s64, 2", sW)
        e("v_lshrrev_b32 v1, 4, v0\nv_add_u32 v1, s64, v1\nv_xor_b32 v1, v1, v0\nv_and_b32 v1, 7, v1\nv_lshlrev_b32 v1, 4, v1")
        e("s_lshl_b32 s65, s%d, 3\nv_lshrrev_b32 v%d, 3, v0\nv_add_u32 v%d, s65, v%d", sW, vT, vT, vT)
        e("v_mul_u32_u24 v%d, 1280, v%d\nv_add_u32 v%d, v%d, v1", vA, vT, vA, vA)
        e("s_lshl_b32 s%d, s%d, 10", sW1K, sW)
        if r is Q:
            e("s_lshl_b32 s64, s%d, 6\nv_add_u32 v1, s64, v0", sW)
            e("v_mul_u32_u24 v%d, 2185, v1\nv_lshrrev_b32 v%d, 16, v%d", vB, vB, vB)
            e("v_mul_u32_u24 v%d, 30, v%d\nv_sub_u32 v1, v1, v%d", vU, vB, vU)
            e("v_mul_u32_u24 v%d, 26, v1\nv_lshrrev_b32 v%d, 8, v%d\nv_mul_u32_u24 v%d, 1120, v%d", vU, vU, vU, vU, vU)
            e("v_mul_u32_u24 v%d, 3840, v%d\nv_lshl_add_u32 v%d, v1, 4, v%d\nv_add_u32 v%d, v%d, v%d", vB, vB, vB, vB, vB, vB, vU)
            e("s_mov_b32 s%d, -1\ns_cmp_eq_u32 s%d, 3\ns_cselect_b32 s%d, 0xffff, -1", EXB, sW, EXB + 1)
            e("s_mov_b32 s%d, s%d", sWB, sW1K)
        else:
            e("s_and_b32 s64, s%d, 1\ns_lshl_b32 s64, s64, 2", sW)
            e("v_bfe_u32 v1, v0, 4, 1\nv_lshlrev_b32 v1, 1, v1\nv_add_u32 v1, s64, v1\nv_xor_b32 v1, v1, v0\nv_and_b32 v1, 7, v1")
            e("v_lshlrev_b32 v1, 4, v1\nv_mul_u32_u24 v%d, 3072, v%d\nv_add_u32 v%d, v%d, v1", vB, vT, vB, vB)
            e("s_mul_i32 s%d, s%d, 3072", sWB, sW)
        e("s_waitcnt lgkmcnt(0)")
        self.srd(X, PX, 2621440)
        if r is Q:
            self.srd(W1, PQKV, 640 * 1920 * 2)
        else:
            self.srd(W1, PW1, 640 * 1536 * 2)

        def tile(t):
            base = slot_of(t) * r.slot
            e("s_mul_i32 s%d, s%d, 163840\ns_lshl_b32 s64, s%d, 7\ns_add_u32 s%d, s%d, s64", sA, sRB, sKT, sA, sA)
            for j in range(4):
                e("s_add_u32 m0, s%d, %d\ns_add_u32 s64, s%d, %d", sW1K, base + 4096 * j, sA, 40960 * j)
                vm.issue("t%d" % t, "buffer_load_dwordx4 v%d, s[%d:%d], s64 offen lds", vA, X, X + 3)
            if r is Q:
                e("s_mul_i32 s%d, s%d, 160\ns_mul_i32 s64, s%d, 245760\ns_add_u32 s%d, s%d, s64", sBo, sGRP, sKT, sBo, sBo)
                e("s_mov_b64 exec, s[%d:%d]", EXB, EXB + 1)
                for c in range(8):
                    e("s_add_u32 m0, s%d, %d\ns_add_u32 s64, s%d, %d", sWB, base + 16384 + c * 4096 + (c & 1) * 128, sBo, c * 30720)
                    vm.issue("t%d" % t, "buffer_load_dwordx4 v%d, s[%d:%d], s64 offen lds", vB, W1, W1 + 3)
                e("s_mov_b64 exec, -1")
            else:
                e("s_mul_i32 s%d, s%d, 384\ns_mul_i32 s64, s%d, 196608\ns_add_u32 s%d, s%d, s64", sBo, sGRP, sKT, sBo, sBo)
                for cc in range(2):
                    for a in range(3):
                        e("s_add_u32 m0, s%d, %d\ns_add_u32 s64, s%d, %d", sWB, base + 16384 + cc * 12288 + a * 1024, sBo, cc * 98304 + 128 * a)
                        vm.issue("t%d" % t, "buffer_load_dwordx4 v%d, s[%d:%d], s64 offen lds", vB, W1, W1 + 3)
            e("s_add_u32 s%d, s%d, 1\ns_cmp_eq_u32 s%d, 10\ns_cselect_b32 s%d, 0, s%d", sKT, sKT, sKT, sKT, sKT)

        for t in range(3):
            tile(t)
        self.stamp(1)
        self.srd(W2, PW2, 1536 * 640 * 2)
        self.srd(WO, PWO, 640 * 640 * 2)
        self.srd(WS, PWS, WS_SIZE)
        self.srd(OUT, POUT, 2621440)
        self.srd(DBG, PDBG, 256)
        self.phase2_ids(r)
        self.swz128(vB2, 1, 1280)
        e("v_lshrrev_b32 v1, 5, v0\nv_mul_u32_u24 v1, %d, v1\nv_add_u32 v%d, v%d, v1", 36 * 1280, vBX, vB2)
        e("v_lshlrev_b32 v%d, 4, v0\nv_lshlrev_b32 v%d, 2, v0", vL16, vL4)
        e("s_lshr_b32 s64, s%d, 3\ns_add_u32 s65, s%d, %d\ns_lshr_b32 s65, s65, 3\ns_sub_u32 s65, s65, s64", sRT0, sRT0, r.rt - 1)
        e("s_lshl_b32 s64, s64, 7\ns_add_u32 s64, s64, 0x%x\ns_lshl_b32 s65, s65, 7", WS_FLAGS)
        e("v_lshrrev_b32 v1, 5, v0\nv_mul_u32_u24 v1, s65, v1\nv_and_b32 v%d, 31, v0\nv_lshl_add_u32 v%d, v%d, 2, v1\nv_add_u32 v%d, s64, v%d",
          vHF, vHF, vHF, vHF, vHF)
        e("v_add_u32 v%d, 2048, v%d", vOF, vHF)
        if r is Q:
            e("s_lshl_b32 s64, s%d, 8\ns_add_u32 s64, s64, 0x%x\nv_add_u32 v%d, s64, v%d", sGRP, WS_FLAGS + 4096, vKF, vL4)
            e("s_lshl_b32 s64, s%d, 6\nv_add_u32 v1, s64, v0\nv_lshlrev_b32 v%d, 4, v1", sW, vKVA)
            e("s_mul_i32 s65, s%d, %d\ns_add_u32 s65, s65, 0x%x\nv_add_u32 v%d, s65, v%d", sGRP, 16 * KVP_RB, WS_KVP, vKVA, vKVA)
            e("v_mov_b32 v%d, 0x%x\nv_cmp_gt_u32 vcc, 210, v1\nv_cndmask_b32 v%d, v%d, v%d, vcc", vT, OOB, vKVA, vT, vKVA)
            e("v_mul_u32_u24 v%d, 205, v1\nv_lshrrev_b32 v%d, 14, v%d\nv_mul_u32_u24 v%d, 560, v%d\nv_add_u32 v%d, v%d, v1",
              vU, vU, vU, vU, vU, vU, vU)
            e("s_mul_i32 s65, s%d, 80\nv_add_u32 v%d, s65, v%d\nv_lshlrev_b32 v%d, 2, v%d\nv_add_u32 v%d, 0x%x, v%d",
              sGRP, vU, vU, vU, vU, vU, WS_CSUM, vU)
            e("v_cmp_gt_u32 vcc, 240, v1\nv_cndmask_b32 v%d, v%d, v%d, vcc", vCSA, vT, vU)
        else:
            e("s_lshl_b32 s64, s%d, 6\nv_add_u32 v1, s64, v0", sW)
            e("s_mul_i32 s65, s%d, 192\ns_add_u32 s65, s65, 1920\nv_add_u32 v%d, s65, v1\nv_lshlrev_b32 v%d, 2, v%d\nv_add_u32 v%d, 0x%x, v%d",
              sGRP, vU, vU, vU, vU, WS_CSUM, vU)
            e("v_mov_b32 v%d, 0x%x\nv_cmp_gt_u32 vcc, 192, v1\nv_cndmask_b32 v%d, v%d, v%d, vcc", vT, OOB, vCSA, vT, vU)

        e("s_mov_b32 s%d, s71\ns_mov_b32 s%d, s71", sTA, sTB)

        def adv(s, n):
            if n < 11:
                e("s_add_u32 s%d, s%d, 1\ns_cmp_eq_u32 s%d, 12\ns_cselect_b32 s%d, 0, s%d", s, s, s, s, s)
            elif n == 11:
                e("s_mov_b32 s%d, s72", s)
            elif n < 15:
                e("s_add_u32 s%d, s%d, 1\ns_and_b32 s%d, s%d, 3", s, s, s, s)

        def btile(n):
            base = r.bbase + r.bidx(n) * 16384
            e("s_lshl_b32 s65, s%d, 12\ns_lshl_b32 s66, s%d, 7", sW, sCBG)
            if n < 12:
                e("s_lshl_b32 s%d, s%d, 2\ns_add_u32 s%d, s%d, s%d\ns_mul_i32 s%d, s%d, 40960\ns_add_u32 s%d, s%d, s66",
                  sBT, sTB, sBT, sBT, sW, sBT, sBT, sBT, sBT)
                rows, srd, va = (0, 8, 16, 24), W2, vB2
            elif n < 16:
                e("s_lshl_b32 s%d, s%d, 2\ns_add_u32 s%d, s%d, s%d\ns_mul_i32 s%d, s%d, 51200\ns_add_u32 s%d, s%d, s66",
                  sBT, sTB, sBT, sBT, sW, sBT, sBT, sBT, sBT)
                rows, srd, va = (0, 8, 20, 28), WO, vB2
            else:
                e("s_mul_i32 s%d, s%d, 204800\ns_add_u32 s%d, s%d, s66", sBT, sW, sBT, sBT)
                rows, srd, va = (16, 96, 36, 116), WO, vBX
            for q in range(4):
                e("s_add_u32 m0, s65, %d\ns_add_u32 s64, s%d, %d", base + q * 1024, sBT, rows[q] * 1280)
                vm.issue("B%d" % n, "buffer_load_dwordx4 v%d, s[%d:%d], s64 offen lds", va, srd, srd + 3)
            adv(sTB, n)

        def atile(n):
            base = (n % 3) * r.aslot
            e("s_mul_i32 s65, s%d, %d\ns_mul_i32 s66, s%d, %d", sW, r.rt * 1024, sRT0, RT_STRIDE)
            if n < 16:
                e("s_lshl_b32 s%d, s%d, 2\ns_add_u32 s%d, s%d, s%d", sAT, sTA, sAT, sAT, sW)
                if n >= 12:
                    e("s_add_u32 s%d, s%d, 48", sAT, sAT)
            else:
                e("s_add_u32 s%d, s%d, 64", sAT, sW)
            e("s_lshl_b32 s%d, s%d, 10\ns_add_u32 s%d, s%d, s66", sAT, sAT, sAT, sAT)
            for k in range(r.rt):
                e("s_add_u32 m0, s65, %d\ns_add_u32 s64, s%d, %d", base + k * 1024, sAT, k * RT_STRIDE)
                vm.issue("A%d" % n, "buffer_load_dwordx4 v%d, s[%d:%d], s64 offen sc1 lds", vL16, WS, WS + 3)
            adv(sTA, n)

        def xotile():
            e("s_mul_i32 s66, s%d, 20480\ns_lshl_b32 s65, s%d, 7\ns_add_u32 s66, s66, s65\ns_mul_i32 s65, s%d, 10240\ns_add_u32 s66, s66, s65",
              sRT0, sCBG, sW)
            for j in range(r.rt // 2):
                e("s_add_u32 m0, s%d, %d\ns_add_u32 s64, s66, %d", sW1K, r.xo + j * 4096, j * 40960)
                vm.issue("XO", "buffer_load_dwordx4 v%d, s[%d:%d], s64 offen lds", vB2, X, X + 3)

        vm.wait("t0")
        e("s_barrier")
        self.stamp(2)
        l1, l2, l3, lj = (e.newlabel("svc") for _ in range(4))
        e("v_mov_b32 v%d, 0x%x\nv_mov_b32 v%d, 0", vT, OOB, vU)
        e("s_cmp_eq_u32 s%d, 1\ns_cbranch_scc1 %s\ns_cmp_eq_u32 s%d, 2\ns_cbranch_scc1 %s\ns_cmp_eq_u32 s%d, 3\ns_cbranch_scc1 %s",
          sW, l1, sW, l2, sW, lj)
        e("v_add_u32 v1, %d, v%d", r.svc, vL4)
        for g in range(16):
            e("ds_read_b32 v%d, v1 offset:%d", 32 + g, g * 256)
        e("s_cmp_ge_u32 s%d, 27\ns_cbranch_scc1 %s", sI, l3)
        e("s_mul_i32 s64, s%d, 52\ns_lshr_b32 s64, s64, 8\ns_mul_i32 s64, s64, 320\ns_lshl_b32 s65, s%d, 6\ns_add_u32 s64, s64, s65", sI, sI)
        e("s_mul_i32 s65, s%d, 320\ns_add_u32 s64, s64, s65", sB_)
        e("s_mul_i32 s65, s%d, 768\ns_lshl_b32 s66, s%d, 6\ns_add_u32 s65, s65, s66\ns_add_u32 s65, s65, 960", sB_, sI)
        e("s_cmp_ge_u32 s%d, 15\ns_cselect_b32 s64, s65, s64\ns_lshl_b32 s64, s64, 2", sI)
        e("s_mul_i32 s65, s%d, %d\ns_add_u32 s64, s64, s65\ns_add_u32 s64, s64, 0x%x\nv_add_u32 v%d, s64, v%d", sP, CSUM_Q, WS_CSUM, vT, vL4)
        e.label(l3)
        e("s_waitcnt lgkmcnt(0)")
        for st in (8, 4, 2, 1):
            for g in range(st):
                e("v_add_f32 v%d, v%d, v%d", 32 + g, 32 + g, 32 + g + st)
        e("v_mov_b32 v%d, v32\ns_branch %s", vU, lj)
        e.label(l1)
        e("v_add_u32 v1, %d, v%d\nds_read_b32 v%d, v1", r.svc2, vL4, vU)
        e("s_lshl_b32 s64, s%d, 4\ns_add_u32 s64, s64, s%d\ns_lshl_b32 s64, s64, 7\ns_add_u32 s64, s64, 0x%x", sRB, sC16, WS_STATS)
        e("v_add_u32 v1, s64, v%d\nv_cmp_gt_u32 vcc, 32, v0\nv_cndmask_b32 v%d, v%d, v1, vcc\ns_waitcnt lgkmcnt(0)\ns_branch %s", vL4, vT, vT, lj)
        e.label(l2)
        e("s_lshl_b32 s64, s%d, 7\ns_lshl_b32 s65, s%d, 4\ns_add_u32 s64, s64, s65\ns_add_u32 s64, s64, 0x%x", sRB, sGRP,
          WS_FLAGS + (2048 if r is Q else 0))
        e("v_add_u32 v1, s64, v%d\nv_cmp_gt_u32 vcc, 4, v0\nv_cndmask_b32 v%d, v%d, v1, vcc", vL4, vT, vT)
        if r is Q:
            e("s_lshl_b32 s64, s%d, 8\ns_lshl_b32 s65, s%d, 4\ns_add_u32 s64, s64, s65\ns_add_u32 s64, s64, 0x%x", sGRP, sRB, WS_FLAGS + 4096 - 16)
            e("v_add_u32 v1, s64, v%d\nv_lshrrev_b32 v16, 2, v0\nv_cmp_eq_u32 vcc, 1, v16\nv_cndmask_b32 v%d, v%d, v1, vcc", vL4, vT, vT)
        e.label(lj)
        vm.issue("svc", "buffer_store_dword v%d, v%d, s[%d:%d], 0 offen sc1", vU, vT, WS, WS + 3)

        for t in range(10):
            if t + 1 <= 9:
                vm.wait("t%d" % (t + 1))
            if t + 1 == 3:
                vm.wait("svc")
            if t + 1 == 9:
                vm.wait("cs")
                e("v_add_f32 v32, v32, v33\nv_add_f32 v34, v34, v35\nv_add_f32 v32, v32, v34")
                e("s_lshl_b32 s64, s%d, 8\ns_add_u32 s64, s64, %d\nv_add_u32 v1, s64, v%d\nds_write_b32 v1, v32\ns_waitcnt lgkmcnt(0)", sW, r.cs, vL4)
            e("s_barrier")
            if t + 1 == 3:
                e("s_and_b32 s64, s2, 63\ns_lshl_b32 s64, s64, 2\ns_cmp_eq_u32 s%d, 0\ns_cselect_b32 s64, s64, 0x%x", sW, OOB)
                e("v_mov_b32 v%d, 0x%x\nv_mov_b32 v1, s64\nv_cmp_eq_u32 vcc, 0, v0\nv_cndmask_b32 v%d, v%d, v1, vcc\nv_mov_b32 v%d, 1",
                  vT, OOB, vT, vT, vU)
                vm.issue("s0", "buffer_atomic_add v%d, v%d, s[%d:%d], 0 offen", vU, vT, DBG, DBG + 3)
            if t + 1 == 5:
                vm.issue("p0", "buffer_load_dword v%d, v%d, s[%d:%d], 0 offen sc1", vPOLL, vL4, DBG, DBG + 3)
            if t + 3 <= 9:
                tile(t + 3)
            if t + 1 == 7:
                self.spin(vm, vPOLL, vL4, DBG, 4, "p0")
                e("s_lshl_b32 s64, s%d, 11\ns_lshl_b32 s65, s%d, 9\ns_add_u32 s64, s64, s65\ns_add_u32 s64, s64, 0x%x", sRB, sW, WS_STATS)
                e("s_add_u32 m0, s65, %d\ns_mov_b32 exec_hi, 0", r.st)
                vm.issue("cs", "buffer_load_dwordx4 v%d, s[%d:%d], s64 offen sc1 lds", vL16, WS, WS + 3)
                e("s_mov_b64 exec, -1")
                for q in range(4):
                    e("s_mov_b32 s64, %d", q * CSUM_Q)
                    vm.issue("cs", "buffer_load_dword v%d, v%d, s[%d:%d], s64 offen sc1", 32 + q, vCSA, WS, WS + 3)
            if t + 1 == 8:
                for n in range(4 if r is F else 3):
                    btile(n)
            if t + 1 == 9 and r is Q:
                btile(3)
                btile(4)
        self.stamp(3)
        if r is F:
            xotile()
        self.spin(vm, vPOLL, vHF, WS, 1, None)
        self.stamp(4)
        for n in range(3):
            atile(n)
        if r is Q:
            e("s_barrier")
            self.stamp(5)
            e("s_lshl_b32 s64, s%d, 11\ns_add_u32 s64, s64, %d\nv_lshl_add_u32 v1, v0, 5, s64", sW, Q.scat)
            e("ds_read_b128 v[32:35], v1\nds_read_b128 v[36:39], v1 offset:16\nds_read_b128 v[40:43], v1 offset:6720\nds_read_b128 v[44:47], v1 offset:6736")
            e("s_mul_i32 s64, s%d, %d\ns_waitcnt lgkmcnt(0)", sRB, KVP_RB)
            for k in range(4):
                e("v_pk_add_f32 v[%d:%d], v[%d:%d], v[%d:%d]", 32 + 2 * k, 33 + 2 * k, 32 + 2 * k, 33 + 2 * k, 40 + 2 * k, 41 + 2 * k)
            for k in range(4):
                e("v_cvt_pk_bf16_f32 v%d, v%d, v%d", 48 + k, 32 + 2 * k, 33 + 2 * k)
            vm.issue("kvp", "buffer_store_dwordx4 v[48:51], v%d, s[%d:%d], s64 offen sc1", vKVA, WS, WS + 3)
            e("s_lshl_b32 s64, s%d, 8\ns_lshl_b32 s65, s%d, 4\ns_add_u32 s64, s64, s65\ns_lshl_b32 s65, s%d, 2\ns_add_u32 s64, s64, s65\ns_add_u32 s64, s64, 0x%x",
              sGRP, sRB, sW, WS_FLAGS + 4096)
            e("v_mov_b32 v%d, 1\nv_mov_b32 v%d, s64", vU, vT)
            vm.wait_all()
            e("s_mov_b64 exec, 1")
            vm.issue("kvf", "buffer_store_dword v%d, v%d, s[%d:%d], 0 offen sc1", vU, vT, WS, WS + 3)
            e("s_mov_b64 exec, -1")
            self.stamp(6)

        for n in range(17):
            if r is Q and n == 3:
                vm.wait("kvl")
                e("s_mov_b32 s64, 0x3f80\ns_mov_b32 s65, 0x3f800000")
                for k in range(8):
                    e("v_mov_b32 v%d, 0", 16 + k)
                for rb in range(16):
                    for k in range(4):
                        e("v_dot2c_f32_bf16 v%d, s64, v%d\nv_dot2c_f32_bf16 v%d, s65, v%d", 16 + 2 * k, 32 + 4 * rb + k, 17 + 2 * k, 32 + 4 * rb + k)
                for k in range(4):
                    e("v_cvt_pk_bf16_f32 v%d, v%d, v%d", 24 + k, 16 + 2 * k, 17 + 2 * k)
                e("s_lshl_b32 s64, s%d, 10\ns_add_u32 s64, s64, %d\nv_add_u32 v1, s64, v%d", sW, Q.kvsum, vL16)
                e("s_cmp_eq_u32 s%d, 3\ns_cselect_b32 exec_lo, 0x3ffff, -1\ns_cselect_b32 exec_hi, 0, -1", sW)
                e("ds_write_b128 v1, v[24:27]\ns_mov_b64 exec, -1\ns_waitcnt lgkmcnt(0)")
            vm.wait("A%d" % n)
            if n == 16:
                vm.wait_all()
            e("s_barrier")
            if n in (0, 3, 10, 12, 16):
                self.stamp({0: 7, 3: 8, 10: 9, 12: 11, 16: 12}[n])
            if r is Q and n == 0:
                vm.issue("pk", "buffer_load_dword v%d, v%d, s[%d:%d], 0 offen sc1", vPOLL, vKF, WS, WS + 3)
                xotile()
            if r is Q and n == 1:
                self.spin(vm, vPOLL, vKF, WS, 1, "pk")
                for rb in range(16):
                    e("s_mov_b32 s64, %d", rb * KVP_RB)
                    vm.issue("kvl", "buffer_load_dwordx4 v[%d:%d], v%d, s[%d:%d], s64 offen sc1", 32 + 4 * rb, 35 + 4 * rb, vKVA, WS, WS + 3)
            if n == 9:
                vm.issue("po", "buffer_load_dword v%d, v%d, s[%d:%d], 0 offen sc1", vPOLL, vOF, WS, WS + 3)
            nb = n - 1 + r.nb
            if n >= 1 and n + 2 == 12:
                btile(nb)
                self.spin(vm, vPOLL, vOF, WS, 1, "po")
                self.stamp(10)
                atile(n + 2)
            elif n >= 1:
                if n + 2 <= 16:
                    atile(n + 2)
                if nb <= 16:
                    btile(nb)
        e("v_mov_b32 v7, v%d", vB2)
        e("s_branch L_final_" + r.name)

    def service(self, r):
        e = self.e
        e("s_lshl_b32 s64, s%d, 4\ns_add_u32 s64, s64, s%d\ns_lshl_b32 s64, s64, 2\ns_add_u32 s64, s64, s%d\ns_lshl_b32 s64, s64, 1", sRB, sC16, sW)
        e("v_lshrrev_b32 v1, 5, v0\nv_add_u32 v1, s64, v1\nv_mul_u32_u24 v1, 1280, v1\nv_and_b32 v2, 31, v0\nv_lshl_add_u32 v1, v2, 4, v1")
        e("v_mov_b32 v3, 0x%x\nv_cmp_gt_u32 vcc, 16, v2\nv_cndmask_b32 v3, v3, v1, vcc", OOB)
        e("s_mul_i32 s64, s%d, 52\ns_lshr_b32 s64, s64, 8\ns_mul_i32 s64, s64, 320\ns_lshl_b32 s65, s%d, 6\ns_add_u32 s64, s64, s65", sI, sI)
        e("s_mul_i32 s65, s%d, 320\ns_add_u32 s64, s64, s65", sB_)
        e("s_mul_i32 s65, s%d, 768\ns_lshl_b32 s66, s%d, 6\ns_add_u32 s65, s65, s66\ns_sub_u32 s65, s65, 960", sB_, sI)
        e("s_cmp_ge_u32 s%d, 15\ns_cselect_b32 s64, s65, s64\ns_movk_i32 s65, 3840\ns_cselect_b32 s65, 3072, s65\ns_lshl_b32 s64, s64, 1", sI)
        e("s_mul_i32 s66, s%d, 160\ns_lshl_b32 s67, s%d, 3\ns_add_u32 s66, s66, s67", sP, sW)
        e("v_lshrrev_b32 v4, 3, v0\nv_add_u32 v4, s66, v4\nv_mul_lo_u32 v4, v4, s65\nv_and_b32 v5, 7, v0\nv_lshl_add_u32 v4, v5, 4, v4\nv_add_u32 v4, s64, v4")
        e("s_lshl_b32 s65, s65, 5")
        e("s_waitcnt lgkmcnt(0)")
        self.srd(X, PX, 2621440)
        e("s_cmp_ge_u32 s%d, 15\ns_cselect_b32 s%d, s%d, s%d\ns_cselect_b32 s%d, s%d, s%d", sI, TMPD, PW1, PQKV, TMPD + 1, PW1 + 1, PQKV + 1)
        e("s_mov_b32 s66, %d\ns_cselect_b32 s%d, %d, s66\ns_mov_b32 s%d, 0x20000", 640 * 1920 * 2, TMPD + 2, 640 * 1536 * 2, TMPD + 3)
        e("s_cmp_ge_u32 s%d, 27\ns_cselect_b32 s%d, 0, s%d", sI, TMPD + 2, TMPD + 2)
        e("buffer_load_dwordx4 v[32:35], v1, s[%d:%d], 0 offen", X, X + 3)
        e("buffer_load_dwordx4 v[36:39], v1, s[%d:%d], 0 offen offset:512", X, X + 3)
        e("buffer_load_dwordx4 v[40:43], v3, s[%d:%d], 0 offen offset:1024", X, X + 3)
        e("s_mov_b32 s66, 0")
        for j in range(5):
            e("buffer_load_dwordx4 v[%d:%d], v4, s[%d:%d], s66 offen", 44 + 4 * j, 47 + 4 * j, TMPD, TMPD + 3)
            if j < 4:
                e("s_add_u32 s66, s66, s65")

    def service_finish(self, r):
        e = self.e
        e("s_mov_b32 s64, 0x3f803f80\ns_mov_b32 s65, 0x3f80\ns_mov_b32 s66, 0x3f800000")
        for k in range(10):
            e("v_mov_b32 v%d, 0", 64 + k)
        e("s_waitcnt vmcnt(5)")
        for k in range(12):
            e("v_dot2c_f32_bf16 v72, s64, v%d\nv_dot2c_f32_bf16 v73, v%d, v%d", 32 + k, 32 + k, 32 + k)
        for ror in (8, 4, 2, 1):
            e("v_add_f32_dpp v72, v72, v72 row_ror:%d row_mask:0xf bank_mask:0xf", ror)
            e("v_add_f32_dpp v73, v73, v73 row_ror:%d row_mask:0xf bank_mask:0xf", ror)
        e("ds_swizzle_b32 v74, v72 offset:0x401F\nds_swizzle_b32 v75, v73 offset:0x401F")
        e("s_waitcnt vmcnt(0)")
        for j in range(5):
            for k in range(4):
                e("v_dot2c_f32_bf16 v%d, s65, v%d\nv_dot2c_f32_bf16 v%d, s66, v%d", 64 + 2 * k, 44 + 4 * j + k, 65 + 2 * k, 44 + 4 * j + k)
        e("s_waitcnt lgkmcnt(0)")
        e("v_add_f32 v72, v72, v74\nv_add_f32 v73, v73, v75")
        e("v_mul_f32 v72, 0x%x, v72\nv_mul_f32 v73, 0x%x, v73\nv_fma_f32 v73, -v72, v72, v73\nv_max_f32 v73, 0, v73\nv_add_f32 v73, 0x%x, v73",
          f2u(1.0 / 640), f2u(1.0 / 640), f2u(1e-5))
        e("v_rsq_f32 v74, v73\nv_sqrt_f32 v75, v73")
        for k in range(8):
            e("v_add_f32_dpp v%d, v%d, v%d row_ror:8 row_mask:0xf bank_mask:0xf", 64 + k, 64 + k, 64 + k)
        e("s_lshl_b32 s64, s%d, 3\ns_add_u32 s64, s64, %d\nv_lshrrev_b32 v1, 5, v0\nv_lshl_add_u32 v1, v1, 2, s64", sW, r.svc2)
        e("ds_write_b32 v1, v72\nds_write_b32 v1, v74 offset:32\nds_write_b32 v1, v75 offset:64")
        e("s_lshl_b32 s64, s%d, 10\ns_add_u32 s64, s64, %d\nv_lshrrev_b32 v1, 4, v0\nv_lshl_add_u32 v1, v1, 8, s64", sW, r.svc)
        e("v_and_b32 v76, 7, v0\nv_lshl_add_u32 v1, v76, 5, v1")
        e("ds_write_b128 v1, v[64:67]\nds_write_b128 v1, v[68:71] offset:16")

    def compute(self, r):
        e = self.e
        sRG, sCG, sSL, sDL, sN = 73, 74, 75, 76, 77
        e.label("L_compute_" + r.name)
        self.service(r)
        e("s_lshr_b32 s%d, s%d, 1\ns_and_b32 s%d, s%d, 1", sRG, sW, sCG, sW)
        self.srd(WS, PWS, WS_SIZE)
        self.srd(OUT, POUT, 2621440)
        self.phase2_ids(r)
        nct = r.nct
        Wb = (32, 64) if r is Q else (32, 56)
        Xb = (96, 112)
        acc = (lambda ct, mt: 128 + (ct * 4 + mt) * 4)
        for k in range(nct * 16):
            e("v_mov_b32 v%d, 0", 128 + k)
        self.service_finish(r)
        vG, vJ = 30, 31
        e("v_lshrrev_b32 v%d, 4, v0\nv_and_b32 v%d, 15, v0", vG, vJ)
        e("v_lshrrev_b32 v1, 1, v%d\nv_xor_b32 v1, v1, v%d\nv_lshlrev_b32 v1, 4, v1\nv_lshl_add_u32 v1, v%d, 7, v1", vJ, vG, vJ)
        e("s_lshl_b32 s64, s%d, 13\nv_add_u32 v2, s64, v1\nv_xor_b32 v3, 64, v2", sRG)
        if r is Q:
            e("v_and_b32 v1, 1, v%d\nv_lshlrev_b32 v1, 7, v1\nv_lshl_add_u32 v1, v%d, 12, v1", vG, vG)
            e("v_lshrrev_b32 v8, 2, v%d\nv_mul_u32_u24 v8, 480, v8\nv_add_u32 v1, v1, v8", vJ)
            e("s_mul_i32 s64, s%d, 80\ns_add_u32 s64, s64, 16384\nv_add_u32 v1, s64, v1", sCG)
            e("v_and_b32 v8, 3, v%d\nv_lshl_add_u32 v4, v8, 3, v1", vJ)
            e("v_and_b32 v9, 1, v8\nv_mul_u32_u24 v9, 40, v9\nv_add_u32 v6, v1, v9\nv_add_u32 v6, 32, v6")
            e("v_lshrrev_b32 v9, 1, v8\nv_mul_u32_u24 v9, 160, v9\nv_add_u32 v5, v6, v9\nv_add_u32 v5, 160, v5")
            waddr = [(4, 0), (4, 40), (6, 0), (4, 160), (4, 200), (5, 0), (4, 320), (4, 360)]
            wkk, wrd, aregs = 16384, 1920, [2, 3, 4, 5, 6]
        else:
            e("v_mul_u32_u24 v1, 3072, v%d\nv_lshrrev_b32 v10, 2, v%d\nv_lshl_add_u32 v1, v10, 7, v1", vG, vJ)
            e("v_and_b32 v10, 3, v%d\nv_lshl_add_u32 v1, v10, 3, v1\nv_add_u32 v1, 16384, v1", vJ)
            e("v_and_b32 v10, 1, v%d\nv_lshlrev_b32 v10, 1, v10\nv_bfe_u32 v11, v%d, 3, 1\nv_or_b32 v10, v10, v11", vG, vJ)
            for jj in range(6):
                e("s_mul_i32 s64, s%d, 6\ns_add_u32 s64, s64, %d\ns_and_b32 s65, s64, 3\ns_lshr_b32 s64, s64, 2\ns_lshl_b32 s64, s64, 10", sCG, jj)
                e("v_xor_b32 v11, s65, v10\nv_lshl_add_u32 v11, v11, 5, v1\nv_add_u32 v%d, s64, v11", 4 + jj)
            waddr = [(4 + jj, 0) for jj in range(6)]
            wkk, wrd, aregs = 12288, 512, [2, 3, 4, 5, 6, 7, 8, 9]

        def reads(buf, kk):
            out = []
            for mt in range(4):
                out.append("ds_read_b128 %s, v%d offset:%d" % (vr(Xb[buf] + 4 * mt, 4), 2 + kk, 2048 * mt))
            for ct in range(nct):
                a, off = waddr[ct]
                for rd in range(2):
                    out.append("ds_read_b64_tr_b16 %s, v%d offset:%d" % (vr(Wb[buf] + 4 * ct + 2 * rd, 2), a, off + kk * wkk + rd * wrd))
            return out

        def mfmas(buf):
            out = []
            for ct in range(nct):
                for mt in range(4):
                    w, x, d = vr(Wb[buf] + 4 * ct, 4), vr(Xb[buf] + 4 * mt, 4), vr(acc(ct, mt), 4)
                    a, b = (x, w) if (r is Q and ct >= 3) else (w, x)
                    out.append("v_mfma_f32_16x16x32_bf16 %s, %s, %s, %s" % (d, a, b, d))
            return out

        e("s_mov_b32 s%d, 0\ns_mov_b32 s%d, 10", sSL, sN)
        e("s_waitcnt lgkmcnt(0)\ns_barrier")
        self.stamp(2)
        for l in reads(0, 0):
            e(l)
        loop = "L_k_" + r.name
        e.label(loop)
        e("s_waitcnt lgkmcnt(0)")
        for l in interleave(mfmas(0), reads(1, 1)):
            e(l)
        e("s_mov_b32 s%d, %d\ns_cmp_eq_u32 s%d, 0\ns_cselect_b32 s%d, %d, s%d\ns_cselect_b32 s64, 3, s%d\ns_sub_u32 s%d, s64, 1",
          sDL, -r.slot & 0xffffffff, sSL, sDL, 2 * r.slot, sDL, sSL, sSL)
        e("s_waitcnt lgkmcnt(0)\ns_barrier")
        upd = ["v_add_u32 v%d, s%d, v%d" % (a, sDL, a) for a in aregs]
        for l in interleave(mfmas(1), ["\n".join(upd[:4]), "\n".join(upd[4:])] + reads(0, 0)):
            e(l)
        e("s_sub_u32 s%d, s%d, 1\ns_cmp_lg_u32 s%d, 0\ns_cbranch_scc1 %s", sN, sN, sN, loop)
        e("s_waitcnt lgkmcnt(0)")
        self.stamp(3)
        if r is F:
            self.epilogue_f(acc, sRG, sCG, vG, vJ)
        else:
            self.epilogue_q(acc, sRG, sCG, vG, vJ)
        self.phase2(r, sRG, sCG, vG, vJ)

    def wave_flag(self, base, sa, sha, sb, shb):
        e = self.e
        e("s_lshl_b32 s64, s%d, %d\ns_lshl_b32 s65, s%d, %d\ns_add_u32 s64, s64, s65\ns_lshl_b32 s65, s%d, 2\ns_add_u32 s64, s64, s65\ns_add_u32 s64, s64, 0x%x",
          sa, sha, sb, shb, sW, base)
        e("v_mov_b32 v254, 1\nv_mov_b32 v255, s64\ns_waitcnt vmcnt(0)\ns_mov_b64 exec, 1")
        e("buffer_store_dword v254, v255, s[%d:%d], 0 offen sc1\ns_mov_b64 exec, -1", WS, WS + 3)

    def epilogue_f(self, acc, sRG, sCG, vG, vJ):
        e = self.e
        r = F
        CSr, PAR, T = 32, 56, 72
        e("s_lshl_b32 s64, s%d, 10\ns_add_u32 s64, s64, %d\nv_lshrrev_b32 v1, 3, v%d\nv_lshl_add_u32 v1, v1, 7, s64\nv_and_b32 v2, 7, v%d\nv_lshl_add_u32 v1, v2, 2, v1",
          sRG, r.st, vJ, vJ)
        for mt in range(4):
            e("ds_read2_b32 v[%d:%d], v1 offset0:%d offset1:%d\nds_read_b32 v%d, v1 offset:%d",
              PAR + 4 * mt, PAR + 4 * mt + 1, mt * 64, mt * 64 + 8, PAR + 4 * mt + 2, mt * 256 + 64)
        e("s_mul_i32 s64, s%d, 384\ns_add_u32 s64, s64, %d\nv_lshl_add_u32 v2, v%d, 4, s64", sCG, r.cs, vG)
        for jj in range(6):
            e("ds_read_b128 %s, v2 offset:%d", vr(CSr + 4 * jj, 4), jj * 64)
        e("s_lshl_b32 s64, s%d, 3\ns_lshl_b32 s65, s%d, 2\ns_add_u32 s64, s64, s65\ns_mul_i32 s66, s64, %d", sRB, sRG, RT_STRIDE)
        e("s_mul_i32 s64, s%d, 6\ns_mul_i32 s65, s%d, 3\ns_add_u32 s64, s64, s65\ns_lshl_b32 s64, s64, 10\ns_add_u32 s66, s66, s64", sGRP, sCG)
        e("v_lshlrev_b32 v3, 4, v0\ns_waitcnt lgkmcnt(0)")
        for mt in range(4):
            e("v_sub_f32 v%d, 0, v%d\nv_mul_f32 v%d, 0x%x, v%d", PAR + 4 * mt, PAR + 4 * mt, PAR + 4 * mt + 1, f2u(-LOG2E), PAR + 4 * mt + 1)
        k = 0
        for mt in range(4):
            p = vr(PAR + 4 * mt, 2)
            sg = vr(PAR + 4 * mt + 2, 2)
            for j in range(3):
                t = T + 8 * (k % 2)
                o = T + 16 + 4 * (k % 4)
                k += 1
                prs = [(acc(2 * j + h, mt) + 2 * q, CSr + 4 * (2 * j + h) + 2 * q, t + 4 * h + 2 * q) for h in range(2) for q in range(2)]
                for a, c, w in prs:
                    e("v_pk_fma_f32 %s, %s, %s, %s op_sel_hi:[1,0,1]", vr(a, 2), vr(c, 2), p, vr(a, 2))
                for a, c, w in prs:
                    e("v_pk_mul_f32 %s, %s, %s op_sel:[0,1] op_sel_hi:[1,1]", vr(w, 2), vr(a, 2), p)
                for i in range(8):
                    e("v_exp_f32 v%d, v%d", t + i, t + i)
                for a, c, w in prs:
                    e("v_pk_fma_f32 %s, %s, %s, %s op_sel_hi:[1,0,0]", vr(w, 2), vr(w, 2), sg, sg)
                for i in range(8):
                    e("v_rcp_f32 v%d, v%d", t + i, t + i)
                for a, c, w in prs:
                    e("v_pk_mul_f32 %s, %s, %s", vr(w, 2), vr(w, 2), vr(a, 2))
                for i in range(4):
                    e("v_cvt_pk_bf16_f32 v%d, v%d, v%d", o + i, t + 2 * i, t + 2 * i + 1)
                e("buffer_store_dwordx4 %s, v3, s[%d:%d], s66 offen offset:%d sc1", vr(o, 4), WS, WS + 3, j * 1024)
            if mt < 3:
                e("s_add_u32 s66, s66, %d", RT_STRIDE)
        self.stamp(4)
        self.wave_flag(WS_FLAGS, sRB, 7, sGRP, 4)
        self.stamp(5)

    def phi(self, prs, eps_pair, t):
        e = self.e
        for i, (u, d) in enumerate(prs):
            e("v_pk_mul_f32 %s, %s, s[78:79]", vr(t + 2 * i, 2), vr(u, 2))
        for i in range(2 * len(prs)):
            e("v_exp_f32_e64 v%d, v%d clamp", t + i, t + i)
        for i, (u, d) in enumerate(prs):
            e("v_max_f32 v%d, s80, v%d\nv_max_f32 v%d, s80, v%d", t + 8 + 2 * i, u, t + 9 + 2 * i, u + 1)
        for i, (u, d) in enumerate(prs):
            e("v_pk_add_f32 %s, %s, %s", vr(t + 2 * i, 2), vr(t + 2 * i, 2), vr(t + 8 + 2 * i, 2))
        for i, (u, d) in enumerate(prs):
            e("v_cvt_pk_bf16_f32 v%d, v%d, v%d", d, t + 2 * i, t + 2 * i + 1)

    def epilogue_q(self, acc, sRG, sCG, vG, vJ):
        e = self.e
        r = Q
        PAR, CSK, CSV, CSX, T, XB, P = 32, 64, 66, 68, 70, 92, 100
        e("s_mov_b32 s78, 0x%x\ns_mov_b32 s79, 0x%x\ns_mov_b32 s80, 0x%x\ns_mov_b32 s81, 0x%x", f2u(LOG2E), f2u(LOG2E), f2u(1e-6), f2u(1e-6))
        e("s_lshl_b32 s64, s%d, 10\ns_add_u32 s64, s64, %d\nv_lshrrev_b32 v1, 1, v%d\nv_lshl_add_u32 v1, v1, 7, s64\nv_and_b32 v2, 1, v%d\nv_lshl_add_u32 v1, v2, 4, v1",
          sRG, r.st, vG, vG)
        for mt in range(4):
            e("ds_read_b128 %s, v1 offset:%d\nds_read_b128 %s, v1 offset:%d", vr(PAR + 8 * mt, 4), mt * 256, vr(PAR + 8 * mt + 4, 4), mt * 256 + 32)
        e("s_mul_i32 s64, s%d, 160\ns_add_u32 s64, s64, %d\nv_lshl_add_u32 v2, v%d, 2, s64", sCG, r.cs, vJ)
        e("ds_read2_b32 v[%d:%d], v2 offset0:80 offset1:100\nds_read2_b32 v[%d:%d], v2 offset0:160 offset1:180", CSK, CSK + 1, CSV, CSV + 1)
        e("v_lshrrev_b32 v3, 3, v%d\nv_mul_u32_u24 v3, 320, v3\nv_bfe_u32 v4, v%d, 2, 1\nv_mul_u32_u24 v4, 80, v4\nv_add_u32 v3, v3, v4", vJ, vJ)
        e("v_and_b32 v4, 3, v%d\nv_lshl_add_u32 v3, v4, 2, v3\nv_add_u32 v3, s64, v3\nds_read_b32 v%d, v3 offset:384", vJ, CSX)
        e("v_cmp_gt_u32 s[82:83], 8, v%d\nv_mov_b32 v4, 0\nv_mov_b32 v5, s80\nv_cndmask_b32 v%d, v4, v5, s[82:83]", vJ, CSX + 1)
        e("v_mov_b32 v6, 0x3f803f80\ns_waitcnt lgkmcnt(0)")
        for mt in range(4):
            for q in range(2):
                m, s = vr(PAR + 8 * mt + 2 * q, 2), vr(PAR + 8 * mt + 4 + 2 * q, 2)
                e("v_pk_mul_f32 %s, %s, %s neg_lo:[1,0] neg_hi:[1,0]", m, m, s)

        def norm(ct, mt, cs, hi, eps):
            sel = "op_sel:[0,%d%s] op_sel_hi:[1,%d%s]"
            for q in range(2):
                rm, t = vr(PAR + 8 * mt + 2 * q, 2), vr(T + 16 + 2 * q, 2)
                if eps == "s":
                    e("v_pk_fma_f32 %s, %s, %s, s[80:81] " + sel % (hi, ",0", hi, ",1"), t, rm, vr(cs, 2))
                elif eps == "v":
                    e("v_pk_fma_f32 %s, %s, %s, %s " + sel % (0, ",1", 0, ",1"), t, rm, vr(cs, 2), vr(cs, 2))
                else:
                    e("v_pk_mul_f32 %s, %s, %s " + sel % (hi, "", hi, ""), t, rm, vr(cs, 2))
            for q in range(2):
                a = vr(acc(ct, mt) + 2 * q, 2)
                e("v_pk_fma_f32 %s, %s, %s, %s", a, a, vr(PAR + 8 * mt + 4 + 2 * q, 2), vr(T + 16 + 2 * q, 2))

        for m in range(2):
            for h in range(2):
                mt = 2 * m + h
                for ct, hi in ((6, 0), (7, 1)):
                    norm(ct, mt, CSV, hi, None)
                    for q in range(2):
                        e("v_cvt_pk_bf16_f32 v%d, v%d, v%d", acc(ct, 2 * m) + 2 * h + q, acc(ct, mt) + 2 * q, acc(ct, mt) + 2 * q + 1)
                norm(3, mt, CSK, 0, "s")
                norm(4, mt, CSK, 1, "s")
                self.phi([(acc(ct, mt) + 2 * q, acc(ct, 2 * m) + 2 * h + q) for ct in (3, 4) for q in range(2)], None, T)
                norm(5, mt, CSX, 0, "v")
                for q in range(2):
                    e("v_cvt_pk_bf16_f32 v%d, v%d, v%d", T + 18 + q, acc(5, mt) + 2 * q, acc(5, mt) + 2 * q + 1)
                for q in range(2):
                    e("v_cndmask_b32 v%d, v%d, v6, s[82:83]", XB + 4 * m + 2 * h + q, T + 18 + q)
                self.phi([(acc(5, mt) + 2 * q, acc(5, 2 * m) + 2 * h + q) for q in range(2)], None, T)
            KA, KB, XA, VA, VB = (vr(acc(ct, 2 * m), 4) for ct in (3, 4, 5, 6, 7))
            xb = vr(XB + 4 * m, 4)
            for i, (a, b) in enumerate(((KA, VA), (KA, xb), (XA, VA), (KB, VB), (KB, xb), (XA, VB), (XA, xb))):
                d = vr(P + 4 * i, 4)
                e("v_mfma_f32_16x16x32_bf16 %s, %s, %s, %s", d, a, b, d if m else "0")
        e("s_mul_i32 s64, s%d, 6720\ns_mul_i32 s65, s%d, 3360\ns_add_u32 s64, s64, s65\ns_add_u32 s64, s64, %d", sRG, sCG, r.scat)
        e("v_mul_u32_u24 v1, 80, v%d\nv_add_u32 v1, s64, v1\nv_lshl_add_u32 v2, v%d, 4, v1", vJ, vG)
        e("v_and_b32 v3, 3, v%d\nv_mul_u32_u24 v3, 80, v3\nv_add_u32 v3, 1280, v3\nv_mov_b32 v4, 1600\nv_cmp_eq_u32 vcc, 0, v%d\nv_cndmask_b32 v3, v3, v4, vcc", vJ, vJ)
        e("v_add_u32 v3, s64, v3\nv_lshl_add_u32 v4, v%d, 4, v3\nv_mul_u32_u24 v5, 1680, v%d\nv_add_u32 v1, v1, v5\nv_add_u32 v3, v3, v5", vG, vG)

        def mask(fn):
            m = sum(1 << l for l in range(64) if fn(l >> 4, l & 15))
            e("s_mov_b32 exec_lo, 0x%x\ns_mov_b32 exec_hi, 0x%x", m & 0xffffffff, m >> 32)
        ina = lambda n: n == 0 or 8 <= n < 12
        inb = lambda n: n == 0 or 12 <= n
        e("ds_write_b128 v2, %s\nds_write_b128 v2, %s offset:1680", vr(P, 4), vr(P + 12, 4))
        mask(lambda g, n: ina(n))
        e("ds_write_b128 v4, %s", vr(P + 4, 4))
        mask(lambda g, n: inb(n))
        e("ds_write_b128 v4, %s offset:1680", vr(P + 16, 4))
        mask(lambda g, n: g == 0)
        e("ds_write_b128 v1, %s offset:64", vr(P + 8, 4))
        mask(lambda g, n: g == 1)
        e("ds_write_b128 v1, %s offset:64", vr(P + 20, 4))
        mask(lambda g, n: (g == 0 and ina(n)) or (g == 1 and inb(n)))
        e("ds_write_b128 v3, %s offset:64", vr(P + 24, 4))
        e("s_mov_b64 exec, -1")
        e("s_lshl_b32 s64, s%d, 10\ns_add_u32 s64, s64, %d\nv_lshrrev_b32 v1, 3, v%d\nv_lshl_add_u32 v1, v1, 7, s64\nv_and_b32 v2, 7, v%d\nv_lshl_add_u32 v1, v2, 2, v1",
          sRG, r.st, vJ, vJ)
        for mt in range(4):
            e("ds_read2_b32 v[%d:%d], v1 offset0:%d offset1:%d", PAR + 2 * mt, PAR + 2 * mt + 1, mt * 64, mt * 64 + 8)
        CQ = 40
        e("s_mul_i32 s64, s%d, 160\ns_add_u32 s64, s64, %d\nv_lshl_add_u32 v2, v%d, 4, s64", sCG, r.cs, vG)
        e("ds_read_b128 %s, v2\nds_read_b128 %s, v2 offset:80", vr(CQ, 4), vr(CQ + 4, 4))
        e("v_and_b32 v2, 1, v%d\nv_mul_u32_u24 v2, 80, v2\nv_add_u32 v2, s64, v2\nds_read_b128 %s, v2 offset:64", vG, vr(CQ + 8, 4))
        e("s_waitcnt lgkmcnt(0)\ns_barrier")
        self.stamp(4)
        for mt in range(4):
            e("v_mul_f32_e64 v%d, -v%d, v%d", PAR + 2 * mt, PAR + 2 * mt, PAR + 2 * mt + 1)
        dst = {0: 0, 2: 2, 1: 4}
        for mt in range(4):
            p = vr(PAR + 2 * mt, 2)
            for grp in ((0, 2), (1,)):
                for ct in grp:
                    for q in range(2):
                        e("v_pk_fma_f32 %s, %s, %s, s[80:81] op_sel_hi:[1,0,1]", vr(T + 16 + 2 * q, 2), vr(CQ + 4 * ct + 2 * q, 2), p)
                    for q in range(2):
                        a = vr(acc(ct, mt) + 2 * q, 2)
                        e("v_pk_fma_f32 %s, %s, %s, %s op_sel:[0,1,0] op_sel_hi:[1,1,1]", a, a, p, vr(T + 16 + 2 * q, 2))
                self.phi([(acc(ct, mt) + 2 * q, 8 + 6 * mt + dst[ct] + q) for ct in grp for q in range(2)], None, T)
        self.stamp(5)

    def ostage(self, sRG, sCG):
        e = self.e
        AO, D, T = 160, 184, 232
        vG, vJ = T, T + 1
        e("v_lshrrev_b32 v%d, 4, v0\nv_and_b32 v%d, 15, v0", vG, vJ)
        e("s_mul_i32 s64, s%d, 1680\ns_add_u32 s64, s64, %d", sCG, Q.kvsum)
        e("v_mul_u32_u24 v%d, 40, v%d\nv_add_u32 v%d, s64, v%d", T + 2, vJ, T + 2, T + 2)
        e("v_and_b32 v%d, 3, v%d\nv_mul_u32_u24 v%d, 40, v%d\nv_add_u32 v%d, s64, v%d\nv_add_u32 v%d, 640, v%d", T + 3, vJ, T + 3, T + 3, T + 3, T + 3, T + 3, T + 3)
        e("v_mov_b32 v%d, s64\nv_add_u32 v%d, 800, v%d", T + 4, T + 4, T + 4)
        for k in range(3):
            e("v_lshl_add_u32 v%d, v%d, 3, v%d", T + 5 + k, vG, T + 2 + k)
        for h in range(2):
            for k in range(3):
                lo = AO + 12 * h + 4 * k + (2 if h else 0)
                hi = AO + 12 * h + 4 * k + (0 if h else 2)
                e("v_mov_b32 v%d, 0\nv_mov_b32 v%d, 0", hi, hi + 1)
                e("ds_read_b64 %s, v%d offset:%d", vr(lo, 2), T + 5 + k, 840 * h)
        for h in range(2):
            e("s_mov_b32 exec_lo, 0x%x\ns_mov_b32 exec_hi, 0", 0xffff << (16 * h))
            for k in range(3):
                hi = AO + 12 * h + 4 * k + (0 if h else 2)
                e("ds_read_b64 %s, v%d offset:%d", vr(hi, 2), T + 2 + k, 840 * h + 32)
        e("s_mov_b64 exec, -1")
        e("s_lshl_b32 s64, s%d, 3\ns_lshl_b32 s65, s%d, 2\ns_add_u32 s64, s64, s65\ns_mul_i32 s66, s64, %d", sRB, sRG, RT_STRIDE)
        e("s_lshl_b32 s64, s%d, 1\ns_add_u32 s64, s64, s%d\ns_lshl_b32 s65, s64, 10\ns_add_u32 s67, s66, s65\ns_add_u32 s67, s67, %d", sGRP, sCG, 48 * 1024)
        e("s_lshr_b32 s65, s64, 2\ns_lshl_b32 s65, s65, 10\ns_and_b32 s64, s64, 3\ns_lshl_b32 s64, s64, 8\ns_add_u32 s66, s66, s65\ns_add_u32 s66, s66, s64\ns_add_u32 s66, s66, %d", 64 * 1024)
        e("v_lshlrev_b32 v%d, 4, v0\ns_waitcnt lgkmcnt(0)", T + 8)
        for half in range(2):
            for i in range(2):
                mt = 2 * half + i
                for h in range(2):
                    for k in range(3):
                        e("v_mfma_f32_16x16x32_bf16 %s, %s, %s, 0", vr(D + 24 * i + 12 * h + 4 * k, 4), vr(AO + 12 * h + 4 * k, 4), vr(8 + 6 * mt + 2 * h, 4))
            for i in range(2):
                d = D + 24 * i
                o = T + 10 + 0
                for h in range(2):
                    e("v_add_f32 v%d, 0x%x, v%d", d + 12 * h + 8, f2u(1e-6), d + 12 * h + 8)
                for h in range(2):
                    e("v_rcp_f32 v%d, v%d", d + 12 * h + 8, d + 12 * h + 8)
                for h in range(2):
                    for q in range(4):
                        a = vr(d + 12 * h + 2 * q, 2)
                        e("v_pk_mul_f32 %s, %s, %s op_sel_hi:[1,0]", a, a, vr(d + 12 * h + 8, 2))
                o = T + 12 + 0 if i == 0 else AO - 8
                o2 = o + 4
                for h in range(2):
                    for q in range(2):
                        e("v_cvt_pk_bf16_f32 v%d, v%d, v%d", o + 2 * h + q, d + 12 * h + 2 * q, d + 12 * h + 2 * q + 1)
                        e("v_cvt_pk_bf16_f32 v%d, v%d, v%d", o2 + 2 * h + q, d + 12 * h + 4 + 2 * q, d + 12 * h + 5 + 2 * q)
                e("buffer_store_dwordx4 %s, v%d, s[%d:%d], s67 offen sc1", vr(o, 4), T + 8, WS, WS + 3)
                e("s_mov_b64 exec, 0xffff")
                e("buffer_store_dwordx4 %s, v%d, s[%d:%d], s66 offen sc1", vr(o2, 4), T + 8, WS, WS + 3)
                e("s_mov_b64 exec, -1\ns_add_u32 s66, s66, %d\ns_add_u32 s67, s67, %d", RT_STRIDE, RT_STRIDE)

    def phase2(self, r, sRG, sCG, vG, vJ):
        e = self.e
        sN, sAI, sBI, sDA, sDB = 77, 75, 76, 78, 79
        rw = r.rt // 2
        FR, ACC = 32, 128
        per = 4 * rw + 8
        e("v_lshrrev_b32 v152, 4, v0\nv_and_b32 v153, 15, v0")
        vG, vJ = 152, 153
        e("s_mul_i32 s64, s%d, %d\nv_lshl_add_u32 v2, v0, 4, s64", sRG, rw * 1024)
        e("v_lshrrev_b32 v1, 2, v0\nv_lshrrev_b32 v3, 3, v0\nv_and_b32 v3, 3, v3\ns_lshl_b32 s64, s%d, 1\nv_xor_b32 v3, s64, v3", sCG)
        e("v_lshlrev_b32 v3, 5, v3\nv_lshl_add_u32 v3, v1, 7, v3\nv_and_b32 v1, 3, v0\nv_lshl_add_u32 v3, v1, 3, v3")
        e("v_add_u32 v3, %d, v3\nv_xor_b32 v4, 32, v3", r.bbase + r.bidx(0) * 16384)
        e("v_bfe_u32 v1, v%d, 1, 2\nv_xor_b32 v1, s64, v1\nv_lshlrev_b32 v1, 5, v1\nv_lshl_add_u32 v1, v%d, 7, v1\nv_lshl_add_u32 v1, v%d, 3, v1", vJ, vJ, vG)
        e("s_mul_i32 s64, s%d, %d\ns_add_u32 s64, s64, %d\nv_add_u32 v5, s64, v1\nv_xor_b32 v6, 32, v5", sRG, rw * 2048, r.xo)
        self.swz128(7, 1, 1280)
        for k in range(rw * 8):
            e("v_mov_b32 v%d, 0", ACC + k)
        e("s_mov_b32 s%d, 0\ns_mov_b32 s%d, 0\ns_mov_b32 s%d, 0", sN, sAI, sBI)

        def reads(s):
            f = FR + per * s
            out = ["ds_read_b128 %s, v2 offset:%d" % (vr(f + 4 * k, 4), (s * r.rt + k) * 1024) for k in range(rw)]
            for u in range(2):
                for rd in range(2):
                    out.append("ds_read_b64_tr_b16 %s, v%d offset:%d" % (vr(f + 4 * rw + 4 * u + 2 * rd, 2), 3 + u, s * 4096 + rd * 2048))
            return out

        def mfmas(s):
            f = FR + per * s
            out = []
            for k in range(rw):
                for u in range(2):
                    d = vr(ACC + 8 * k + 4 * u, 4)
                    out.append("v_mfma_f32_16x16x32_bf16 %s, %s, %s, %s" % (d, vr(f + 4 * rw + 4 * u, 4), vr(f + 4 * k, 4), d))
            return out

        nr = rw + 4
        loop, back = "L_p2_" + r.name, "L_p2b_" + r.name
        e.label(loop)
        e("s_barrier")
        for l in reads(0) + reads(1):
            e(l)
        e("s_mov_b32 s%d, %d\ns_add_u32 s%d, s%d, 1\ns_cmp_eq_u32 s%d, 3\ns_cselect_b32 s%d, %d, s%d\ns_cselect_b32 s%d, 0, s%d",
          sDA, r.aslot, sAI, sAI, sAI, sDA, -2 * r.aslot & 0xffffffff, sDA, sAI, sAI)
        step = 16384 if r is F else -16384
        e("s_mov_b32 s%d, %d\ns_add_u32 s%d, s%d, 1\ns_cmp_eq_u32 s%d, %d\ns_cselect_b32 s%d, %d, s%d\ns_cselect_b32 s%d, 0, s%d",
          sDB, step & 0xffffffff, sBI, sBI, sBI, r.nb, sDB, -(r.nb - 1) * step & 0xffffffff, sDB, sBI, sBI)
        e("s_waitcnt lgkmcnt(%d)", nr)
        for l in interleave(mfmas(0), reads(2)):
            e(l)
        e("s_waitcnt lgkmcnt(%d)", nr)
        for l in interleave(mfmas(1), reads(3)):
            e(l)
        e("s_waitcnt lgkmcnt(%d)", nr)
        for l in interleave(mfmas(2), ["v_add_u32 v2, s%d, v2" % sDA, "v_add_u32 v3, s%d, v3" % sDB, "v_add_u32 v4, s%d, v4" % sDB]):
            e(l)
        e("s_waitcnt lgkmcnt(0)")
        for l in mfmas(3):
            e(l)
        if r is Q:
            e("s_cmp_eq_u32 s%d, 3\ns_cbranch_scc1 L_ostage\ns_cmp_eq_u32 s%d, 5\ns_cbranch_scc1 L_oflag", sN, sN)
        e.label(back)
        e("s_add_u32 s%d, s%d, 1\ns_cmp_lg_u32 s%d, 17\ns_cbranch_scc1 %s", sN, sN, sN, loop)
        self.stamp(12)
        for k in range(rw):
            for u in range(2):
                e("ds_read_b64 %s, v%d offset:%d", vr(FR + 4 * k + 2 * u, 2), 5 + u, k * 2048)
        e("s_waitcnt lgkmcnt(0)")
        for k in range(rw):
            for u in range(2):
                x, a, t = FR + 4 * k + 2 * u, ACC + 8 * k + 4 * u, 64
                e("v_lshlrev_b32 v%d, 16, v%d\nv_and_b32 v%d, 0xffff0000, v%d\nv_lshlrev_b32 v%d, 16, v%d\nv_and_b32 v%d, 0xffff0000, v%d",
                  t, x, t + 1, x, t + 2, x + 1, t + 3, x + 1)
                e("v_pk_add_f32 %s, %s, %s\nv_pk_add_f32 %s, %s, %s", vr(a, 2), vr(a, 2), vr(t, 2), vr(a + 2, 2), vr(a + 2, 2), vr(t + 2, 2))
                e("v_cvt_pk_bf16_f32 v%d, v%d, v%d\nv_cvt_pk_bf16_f32 v%d, v%d, v%d", x, a, a + 1, x + 1, a + 2, a + 3)
                e("ds_write_b64 v%d, %s offset:%d", 5 + u, vr(x, 2), k * 2048)
        e("s_waitcnt lgkmcnt(0)")
        e.label("L_final_" + r.name)
        e("s_barrier")
        e("s_lshl_b32 s64, s%d, 10\ns_add_u32 s64, s64, %d\nv_lshl_add_u32 v1, v0, 4, s64\nds_read_b128 v[8:11], v1", sWAVE, r.xo)
        if r is F:
            e("ds_read_b128 v[12:15], v1 offset:8192")
        e("s_mul_i32 s66, s%d, 20480\ns_lshl_b32 s65, s%d, 7\ns_add_u32 s66, s66, s65\ns_mul_i32 s65, s%d, 10240\ns_add_u32 s66, s66, s65",
          sRT0, sCBG, sWAVE)
        e("s_waitcnt lgkmcnt(0)")
        e("buffer_store_dwordx4 v[8:11], v7, s[%d:%d], s66 offen", OUT, OUT + 3)
        if r is F:
            e("s_cmp_ge_u32 s%d, 4\ns_cbranch_scc1 L_done_F\ns_add_u32 s66, s66, 81920", sWAVE)
            e("buffer_store_dwordx4 v[12:15], v7, s[%d:%d], s66 offen", OUT, OUT + 3)
            e.label("L_done_F")
        self.stamp(13)
        self.stamp_flush()
        e("s_endpgm")
        if r is Q:
            e.label("L_ostage")
            self.stamp(8)
            self.ostage(sRG, sCG)
            self.stamp(9)
            e("s_branch " + back)
            e.label("L_oflag")
            self.wave_flag(WS_FLAGS + 2048, sRB, 7, sGRP, 4)
            self.stamp(10)
            e("s_branch " + back)

    def build(self):
        e = self.e
        self.entry()
        e("s_cmp_lt_u32 s%d, 4\ns_cbranch_scc1 L_compute_F", sWAVE)
        self.loader(F)
        self.compute(F)
        e.label("L_role_Q")
        e("s_cmp_lt_u32 s%d, 4\ns_cbranch_scc1 L_compute_Q", sWAVE)
        self.loader(Q)
        self.compute(Q)
        e.label("L_end")
        e("s_endpgm")
        body = fix_hazards(e.L)
        head = open("parallel_sum__linear_attn_block__dense_activation_silu__prompt.s.ref").read()
        head = head.split("; Override launch geometry")[0]
        out = [head.rstrip(),
               "; One persistent launch: 256 workgroups of 8 waves (4 matrix waves, 4 loader waves).",
               "; @launch grid=(256,1,1) block=(512,1,1) lds=163840",
               '.amdgcn_target "amdgcn-amd-amdhsa--gfx950"', ".text", ".globl " + KNAME, ".p2align 8",
               ".type %s,@function" % KNAME, KNAME + ":"]
        out += [l if l.endswith(":") else "    " + l for l in body]
        out += ['.section .rodata,"a"', ".p2align 6", ".amdhsa_kernel " + KNAME,
                "  .amdhsa_next_free_vgpr 256", "  .amdhsa_next_free_sgpr 102", "  .amdhsa_accum_offset 256",
                "  .amdhsa_group_segment_fixed_size 0", "  .amdhsa_kernarg_size 72", "  .amdhsa_user_sgpr_count 2",
                "  .amdhsa_user_sgpr_kernarg_segment_ptr 1", "  .amdhsa_system_sgpr_workgroup_id_x 1", ".end_amdhsa_kernel"]
        return "\n".join(out) + "\n"


if __name__ == "__main__":
    path = sys.argv[1]
    open(path, "w").write(Gen(stamps="--stamps" in sys.argv).build())
```

```python
import sys
from asmlib import Asm, VmTrack, fix_hazards, interleave, f2u, vr, sr

KNAME = "parallel_sum__linear_attn_block__dense_activation_silu__prompt_kernel"

RT_STRIDE = 68 * 1024
WS_STATS = 0x880000
WS_CSUM = 0x888000
CSUM_Q = 13824
WS_KVP = 0x896000
KVP_RB = 3456
WS_FLAGS = 0x902000
WS_STAMP = 0xA00000
WS_SIZE = 0xB00000
OOB = 0x40000000
SPIN_MAX = 1 << 16
KV_CHECK, O_STAGE, O_FLAG = 2, 4, 6

X, W1, W2, WO, WS, OUT, DBG, TMPD = 8, 12, 16, 20, 24, 28, 32, 4
PX, PQKV, PWO, PW1, PW2, POUT, PDBG, PWS = 36, 38, 40, 44, 46, 48, 50, 52
sWAVE, sRB, sGRP, sC16, sP, sB_, sCBG, sRT0, sKT = 54, 55, 56, 57, 58, 59, 60, 61, 62
sW, sI, sT0, sT1, sT2, sT3 = 63, 3, 64, 65, 66, 67
sSTAMP = 84
LOG2E = 1.4426950408889634


class Role:
    pass


F = Role()
F.name, F.slot, F.scr, F.nct = "F", 40960, 151552, 6
F.rt, F.aslot, F.xo, F.bbase, F.nb = 6, 24576, 73728, 86016, 4
F.bidx = lambda n: n % 4
Q = Role()
Q.name, Q.slot, Q.scr, Q.nct = "Q", 49152, 147456, 8
Q.rt, Q.aslot, Q.xo, Q.bbase, Q.nb = 4, 16384, 49152, 65536, 5
Q.bidx = lambda n: 4 - n % 5
Q.scat, Q.kvsum = 49152, 57344
for r_ in (F, Q):
    r_.svc, r_.svc2, r_.st, r_.cs = r_.scr, r_.scr + 4096, r_.scr + 4608, r_.scr + 6656


def slot_of(t):
    return (9 - t) % 3


class Gen:
    def __init__(self, stamps=False):
        self.e = Asm()
        self.stamps = stamps

    def srd(self, d, p, size):
        self.e("s_mov_b32 s%d, s%d\ns_mov_b32 s%d, s%d\ns_mov_b32 s%d, 0x%x\ns_mov_b32 s%d, 0x20000",
               d, p, d + 1, p + 1, d + 2, size, d + 3)

    def stamp(self, k):
        if self.stamps:
            self.e("s_memrealtime s[68:69]\ns_waitcnt lgkmcnt(0)\ns_mov_b32 s%d, s68", sSTAMP + k)

    def stamp_flush(self):
        if not self.stamps:
            return
        e = self.e
        e("s_lshl_b32 s64, s2, 3\ns_add_u32 s64, s64, s%d\ns_lshl_b32 s64, s64, 6\ns_add_u32 s64, s64, 0x%x", sWAVE, WS_STAMP)
        e("v_mov_b32 v1, 0")
        for k in range(16):
            e("v_writelane_b32 v1, s%d, %d", sSTAMP + k, k)
        e("v_lshlrev_b32 v2, 2, v0\ns_mov_b64 exec, 0xffff")
        e("buffer_store_dword v1, v2, s[%d:%d], s64 offen", WS, WS + 3)
        e("s_mov_b64 exec, -1")

    def swz128(self, dst, tmp, stride):
        e = self.e
        e("v_lshrrev_b32 v%d, 4, v0\nv_lshlrev_b32 v%d, 1, v%d\nv_xor_b32 v%d, v%d, v0\nv_and_b32 v%d, 7, v%d",
          tmp, tmp, tmp, tmp, tmp, tmp, tmp)
        e("v_lshlrev_b32 v%d, 4, v%d\nv_lshrrev_b32 v%d, 3, v0\nv_mul_u32_u24 v%d, %d, v%d\nv_add_u32 v%d, v%d, v%d",
          tmp, tmp, dst, dst, stride, dst, dst, dst, tmp)

    def spin(self, vm, vdst, vaddr, srd, want, first_issued):
        e = self.e
        ok, again = e.newlabel("ok"), e.newlabel("spin")
        if first_issued:
            vm.wait(first_issued)
        e("s_cmp_lg_u32 s%d, 0\ns_cbranch_scc1 %s", sW, ok)
        if first_issued:
            e("v_cmp_le_u32 vcc, %d, v%d\ns_cmp_eq_u64 vcc, -1\ns_cbranch_scc1 %s", want, vdst, ok)
        e("s_mov_b32 s%d, %d", sT3, SPIN_MAX)
        e.label(again)
        e("buffer_load_dword v%d, v%d, s[%d:%d], 0 offen sc1", vdst, vaddr, srd, srd + 3)
        e("s_waitcnt vmcnt(0)")
        e("v_cmp_le_u32 vcc, %d, v%d\ns_cmp_eq_u64 vcc, -1\ns_cbranch_scc1 %s", want, vdst, ok)
        e("s_sleep 4\ns_sub_u32 s%d, s%d, 1\ns_cmp_lg_u32 s%d, 0\ns_cbranch_scc1 %s", sT3, sT3, sT3, again)
        e.label(ok)

    def set_flag(self, vm, vaddr, word, vtmp):
        self.e("v_mov_b32 v%d, 1", vtmp)
        vm.issue("flag", "buffer_store_dword v%d, v%d, s[%d:%d], 0 offen offset:%d sc1", vtmp, vaddr, WS, WS + 3, 4 * word)

    def entry(self):
        e = self.e
        e("s_cmp_ge_u32 s2, 256\ns_cbranch_scc1 L_end")
        e("s_load_dwordx16 s[36:51], s[0:1], 0\ns_load_dwordx2 s[52:53], s[0:1], 64")
        e("v_lshrrev_b32 v1, 6, v0\nv_and_b32 v0, 63, v0\nv_readfirstlane_b32 s%d, v1", sWAVE)
        e("s_lshr_b32 s%d, s2, 3", sI)
        e("s_bfe_u32 s%d, s2, 0x20001\ns_and_b32 s%d, s2, 1", sP, sB_)
        e("s_and_b32 s64, s%d, 3\ns_lshl_b32 s%d, s%d, 2\ns_add_u32 s%d, s%d, s64", sI, sRB, sP, sRB, sRB)
        e("s_lshr_b32 s65, s%d, 2\ns_lshl_b32 s%d, s%d, 3\ns_add_u32 s%d, s%d, s65", sI, sC16, sB_, sC16, sC16)
        e("s_lshr_b32 s66, s%d, 3\ns_lshl_b32 s%d, s%d, 2\ns_add_u32 s%d, s%d, s66", sI, sGRP, sB_, sGRP, sGRP)
        e("s_mul_i32 s67, s64, 3\ns_add_u32 s%d, s%d, s67\ns_add_u32 s%d, s%d, s%d", sKT, sC16, sKT, sKT, sP)
        for _ in range(2):
            e("s_sub_u32 s67, s%d, 10\ns_cmp_ge_u32 s%d, 10\ns_cselect_b32 s%d, s67, s%d", sKT, sKT, sKT, sKT)
        e("s_and_b32 s%d, s%d, 3", sW, sWAVE)
        e("s_lshl_b32 s66, s66, 2\ns_add_u32 s70, s66, s64")
        self.stamp(0)
        e("s_bitcmp1_b32 s%d, 2\ns_cbranch_scc1 L_role_Q", sI)

    def phase2_ids(self, r):
        e = self.e
        if r is F:
            e("s_lshr_b32 s64, s70, 2\ns_and_b32 s65, s70, 3")
            e("s_sub_u32 s66, s70, 12\ns_lshr_b32 s67, s66, 1\ns_add_u32 s67, s67, 3\ns_and_b32 s66, s66, 1")
            e("s_cmp_ge_u32 s70, 12\ns_cselect_b32 s64, s67, s64\ns_cselect_b32 s65, s66, s65\ns_mul_i32 s65, s65, 6")
        else:
            e("s_lshr_b32 s64, s70, 1\ns_and_b32 s65, s70, 1\ns_add_u32 s65, s65, 6")
            e("s_sub_u32 s66, s70, 3\ns_sub_u32 s67, s70, 8\ns_cmp_ge_u32 s70, 11\ns_cselect_b32 s66, s67, s66\ns_cselect_b32 s67, 4, 3")
            e("s_cmp_ge_u32 s70, 6\ns_cselect_b32 s64, s67, s64\ns_cselect_b32 s65, s66, s65\ns_lshl_b32 s65, s65, 2")
        e("s_mul_i32 s%d, s%d, 5\ns_add_u32 s%d, s%d, s64", sCBG, sB_, sCBG, sCBG)
        e("s_lshl_b32 s%d, s%d, 5\ns_add_u32 s%d, s%d, s65", sRT0, sP, sRT0, sRT0)
        e("s_mul_i32 s66, s65, 3\ns_lshr_b32 s66, s66, 3\ns_mul_i32 s67, s%d, 5\ns_add_u32 s71, s66, s67", sCBG)
        e("s_mul_i32 s66, s71, 43\ns_lshr_b32 s66, s66, 9\ns_mul_i32 s66, s66, 12\ns_sub_u32 s71, s71, s66")
        e("s_and_b32 s72, s71, 3")

    def loader(self, r):
        e = self.e
        vm = VmTrack(e)
        vA, vB, vB2, vBX, vL16, vT, vU, vPOLL, vHF, vOF, vKF = 2, 3, 4, 5, 6, 7, 8, 9, 10, 11, 12
        vCSA, vL4, vKVA, vMY, vSF, vGF = 13, 14, 15, 28, 29, 30
        sA, sBo, sW1K, sWB = 73, 74, 75, 76
        sTA, sTB, sAT, sBT, sBTo = 77, 78, 79, 80, 81
        EXB = 82
        e.label("L_loader_" + r.name)
        e("s_and_b32 s64, s%d, 1\ns_lshl_b32 s64, s64, 2", sW)
        e("v_lshrrev_b32 v1, 4, v0\nv_add_u32 v1, s64, v1\nv_xor_b32 v1, v1, v0\nv_and_b32 v1, 7, v1\nv_lshlrev_b32 v1, 4, v1")
        e("s_lshl_b32 s65, s%d, 3\nv_lshrrev_b32 v%d, 3, v0\nv_add_u32 v%d, s65, v%d", sW, vT, vT, vT)
        e("v_mul_u32_u24 v%d, 1280, v%d\nv_add_u32 v%d, v%d, v1", vA, vT, vA, vA)
        e("s_lshl_b32 s%d, s%d, 10", sW1K, sW)
        if r is Q:
            e("s_lshl_b32 s64, s%d, 6\nv_add_u32 v1, s64, v0", sW)
            e("v_mul_u32_u24 v%d, 2185, v1\nv_lshrrev_b32 v%d, 16, v%d", vB, vB, vB)
            e("v_mul_u32_u24 v%d, 30, v%d\nv_sub_u32 v1, v1, v%d", vU, vB, vU)
            e("v_mul_u32_u24 v%d, 26, v1\nv_lshrrev_b32 v%d, 8, v%d\nv_mul_u32_u24 v%d, 1120, v%d", vU, vU, vU, vU, vU)
            e("v_mul_u32_u24 v%d, 3840, v%d\nv_lshl_add_u32 v%d, v1, 4, v%d\nv_add_u32 v%d, v%d, v%d", vB, vB, vB, vB, vB, vB, vU)
            e("s_mov_b32 s%d, -1\ns_cmp_eq_u32 s%d, 3\ns_cselect_b32 s%d, 0xffff, -1", EXB, sW, EXB + 1)
            e("s_mov_b32 s%d, s%d", sWB, sW1K)
        else:
            e("s_and_b32 s64, s%d, 1\ns_lshl_b32 s64, s64, 2", sW)
            e("v_bfe_u32 v1, v0, 4, 1\nv_lshlrev_b32 v1, 1, v1\nv_add_u32 v1, s64, v1\nv_xor_b32 v1, v1, v0\nv_and_b32 v1, 7, v1")
            e("v_lshlrev_b32 v1, 4, v1\nv_mul_u32_u24 v%d, 3072, v%d\nv_add_u32 v%d, v%d, v1", vB, vT, vB, vB)
            e("s_mul_i32 s%d, s%d, 3072", sWB, sW)
        e("s_waitcnt lgkmcnt(0)")
        self.srd(X, PX, 2621440)
        if r is Q:
            self.srd(W1, PQKV, 640 * 1920 * 2)
        else:
            self.srd(W1, PW1, 640 * 1536 * 2)

        def tile(t):
            base = slot_of(t) * r.slot
            e("s_mul_i32 s%d, s%d, 163840\ns_lshl_b32 s64, s%d, 7\ns_add_u32 s%d, s%d, s64", sA, sRB, sKT, sA, sA)
            for j in range(4):
                e("s_add_u32 m0, s%d, %d\ns_add_u32 s64, s%d, %d", sW1K, base + 4096 * j, sA, 40960 * j)
                vm.issue("t%d" % t, "buffer_load_dwordx4 v%d, s[%d:%d], s64 offen lds", vA, X, X + 3)
            if r is Q:
                e("s_mul_i32 s%d, s%d, 160\ns_mul_i32 s64, s%d, 245760\ns_add_u32 s%d, s%d, s64", sBo, sGRP, sKT, sBo, sBo)
                e("s_mov_b64 exec, s[%d:%d]", EXB, EXB + 1)
                for c in range(8):
                    e("s_add_u32 m0, s%d, %d\ns_add_u32 s64, s%d, %d", sWB, base + 16384 + c * 4096 + (c & 1) * 128, sBo, c * 30720)
                    vm.issue("t%d" % t, "buffer_load_dwordx4 v%d, s[%d:%d], s64 offen lds", vB, W1, W1 + 3)
                e("s_mov_b64 exec, -1")
            else:
                e("s_mul_i32 s%d, s%d, 384\ns_mul_i32 s64, s%d, 196608\ns_add_u32 s%d, s%d, s64", sBo, sGRP, sKT, sBo, sBo)
                for cc in range(2):
                    for a in range(3):
                        e("s_add_u32 m0, s%d, %d\ns_add_u32 s64, s%d, %d", sWB, base + 16384 + cc * 12288 + a * 1024, sBo, cc * 98304 + 128 * a)
                        vm.issue("t%d" % t, "buffer_load_dwordx4 v%d, s[%d:%d], s64 offen lds", vB, W1, W1 + 3)
            e("s_add_u32 s%d, s%d, 1\ns_cmp_eq_u32 s%d, 10\ns_cselect_b32 s%d, 0, s%d", sKT, sKT, sKT, sKT, sKT)

        for t in range(2):
            tile(t)
        self.stamp(1)
        self.srd(W2, PW2, 1536 * 640 * 2)
        self.srd(WO, PWO, 640 * 640 * 2)
        self.srd(WS, PWS, WS_SIZE)
        self.srd(OUT, POUT, 2621440)
        self.srd(DBG, PDBG, 256)
        self.phase2_ids(r)
        self.swz128(vB2, 1, 1280)
        e("v_lshrrev_b32 v1, 5, v0\nv_mul_u32_u24 v1, %d, v1\nv_add_u32 v%d, v%d, v1", 36 * 1280, vBX, vB2)
        e("v_lshlrev_b32 v%d, 4, v0\nv_lshlrev_b32 v%d, 2, v0", vL16, vL4)
        e("s_mov_b32 s67, 0x%x\ns_cmp_eq_u32 s%d, 0\ns_cselect_b32 s67, 0x%x, s67", OOB, sW, WS_FLAGS)
        e("s_lshr_b32 s64, s%d, 3\ns_add_u32 s65, s%d, %d\ns_lshr_b32 s65, s65, 3\ns_sub_u32 s65, s65, s64", sRT0, sRT0, r.rt - 1)
        e("s_lshl_b32 s64, s64, 10\ns_add_u32 s64, s64, s67\ns_lshl_b32 s65, s65, 10")
        e("v_bfe_u32 v1, v0, 3, 1\nv_mul_u32_u24 v1, s65, v1\nv_and_b32 v%d, 7, v0\nv_lshl_add_u32 v%d, v%d, 7, v1\nv_add_u32 v%d, s64, v%d",
          vHF, vHF, vHF, vHF, vHF)
        e("v_add_u32 v%d, %d, v%d\nv_add_u32 v%d, 4, v%d", vOF, 16384 + 8, vHF, vHF, vHF)
        e("s_lshl_b32 s64, s%d, 10\ns_lshl_b32 s65, s%d, 7\ns_add_u32 s64, s64, s65\ns_add_u32 s64, s64, s67\ns_add_u32 s64, s64, %d",
          sRB, sGRP, 16384 if r is Q else 0)
        e("v_mov_b32 v1, s64\nv_mov_b32 v%d, 0x%x\nv_cmp_eq_u32 vcc, 0, v0\nv_cndmask_b32 v%d, v%d, v1, vcc", vMY, OOB, vMY, vMY)
        e("v_subrev_u32 v1, 16, v0\nv_and_b32 v16, 3, v1\nv_lshrrev_b32 v1, 2, v1\ns_and_b32 s64, s%d, 3", sGRP)
        if r is Q:
            e("v_min_u32 v1, 5, v1\nv_lshrrev_b32 v17, 1, v1\nv_mul_u32_u24 v17, 5, v17\nv_and_b32 v1, 1, v1\nv_add_u32 v1, v1, v17\nv_add_u32 v1, s64, v1")
        else:
            e("v_min_u32 v1, 2, v1\ns_mul_i32 s64, s64, 3\ns_add_u32 s64, s64, 15\nv_add_u32 v1, s64, v1")
        e("v_lshlrev_b32 v16, 5, v16\nv_and_b32 v17, 3, v1\nv_lshl_add_u32 v16, v17, 3, v16\nv_lshrrev_b32 v17, 3, v1\nv_add_u32 v16, v16, v17")
        e("v_bfe_u32 v17, v1, 2, 1\nv_lshl_add_u32 v16, v17, 7, v16\ns_lshl_b32 s64, s%d, 2\nv_add_u32 v16, s64, v16", sB_)
        e("v_bfe_u32 v17, v0, 3, 1\nv_lshlrev_b32 v17, 7, v17\nv_and_b32 v1, 7, v0\nv_add_u32 v17, v17, v1\ns_lshl_b32 s64, s%d, 3\nv_add_u32 v17, s64, v17", sRB)
        e("v_cmp_gt_u32 vcc, 16, v0\nv_cndmask_b32 v16, v16, v17, vcc\nv_lshlrev_b32 v16, 7, v16\nv_add_u32 v%d, s67, v16", vSF)
        e("s_mov_b32 s64, 0x%x\ns_cmp_eq_u32 s%d, 0\ns_cselect_b32 s64, 0, s64\nv_and_b32 v1, 3, v0\nv_lshl_add_u32 v%d, v1, 2, s64", OOB, sW, vGF)
        if r is Q:
            e("s_lshl_b32 s64, s%d, 7\ns_add_u32 s64, s64, s67\ns_add_u32 s64, s64, %d\nv_and_b32 v1, 15, v0\nv_lshl_add_u32 v%d, v1, 10, s64",
              sGRP, 16384 + 4, vKF)
            e("s_lshl_b32 s64, s%d, 6\nv_add_u32 v1, s64, v0\nv_lshlrev_b32 v%d, 4, v1", sW, vKVA)
            e("s_mul_i32 s65, s%d, %d\ns_add_u32 s65, s65, 0x%x\nv_add_u32 v%d, s65, v%d", sGRP, 16 * KVP_RB, WS_KVP, vKVA, vKVA)
            e("v_mov_b32 v%d, 0x%x\nv_cmp_gt_u32 vcc, 210, v1\nv_cndmask_b32 v%d, v%d, v%d, vcc", vT, OOB, vKVA, vT, vKVA)
            e("v_mul_u32_u24 v%d, 205, v1\nv_lshrrev_b32 v%d, 14, v%d\nv_mul_u32_u24 v%d, 560, v%d\nv_add_u32 v%d, v%d, v1",
              vU, vU, vU, vU, vU, vU, vU)
            e("s_mul_i32 s65, s%d, 80\nv_add_u32 v%d, s65, v%d\nv_lshlrev_b32 v%d, 2, v%d\nv_add_u32 v%d, 0x%x, v%d",
              sGRP, vU, vU, vU, vU, vU, WS_CSUM, vU)
            e("v_cmp_gt_u32 vcc, 240, v1\nv_cndmask_b32 v%d, v%d, v%d, vcc", vCSA, vT, vU)
        else:
            e("s_lshl_b32 s64, s%d, 6\nv_add_u32 v1, s64, v0", sW)
            e("s_mul_i32 s65, s%d, 192\ns_add_u32 s65, s65, 1920\nv_add_u32 v%d, s65, v1\nv_lshlrev_b32 v%d, 2, v%d\nv_add_u32 v%d, 0x%x, v%d",
              sGRP, vU, vU, vU, vU, WS_CSUM, vU)
            e("v_mov_b32 v%d, 0x%x\nv_cmp_gt_u32 vcc, 192, v1\nv_cndmask_b32 v%d, v%d, v%d, vcc", vT, OOB, vCSA, vT, vU)

        e("s_mov_b32 s%d, s71\ns_mov_b32 s%d, s71", sTA, sTB)

        def adv(s, n):
            if n < 11:
                e("s_add_u32 s%d, s%d, 1\ns_cmp_eq_u32 s%d, 12\ns_cselect_b32 s%d, 0, s%d", s, s, s, s, s)
            elif n == 11:
                e("s_mov_b32 s%d, s72", s)
            elif n < 15:
                e("s_add_u32 s%d, s%d, 1\ns_and_b32 s%d, s%d, 3", s, s, s, s)

        def btile(n):
            base = r.bbase + r.bidx(n) * 16384
            e("s_lshl_b32 s65, s%d, 12\ns_lshl_b32 s66, s%d, 7", sW, sCBG)
            if n < 12:
                e("s_lshl_b32 s%d, s%d, 2\ns_add_u32 s%d, s%d, s%d\ns_mul_i32 s%d, s%d, 40960\ns_add_u32 s%d, s%d, s66",
                  sBT, sTB, sBT, sBT, sW, sBT, sBT, sBT, sBT)
                rows, srd, va = (0, 8, 16, 24), W2, vB2
            elif n < 16:
                e("s_lshl_b32 s%d, s%d, 2\ns_add_u32 s%d, s%d, s%d\ns_mul_i32 s%d, s%d, 51200\ns_add_u32 s%d, s%d, s66",
                  sBT, sTB, sBT, sBT, sW, sBT, sBT, sBT, sBT)
                rows, srd, va = (0, 8, 20, 28), WO, vB2
            else:
                e("s_mul_i32 s%d, s%d, 204800\ns_add_u32 s%d, s%d, s66", sBT, sW, sBT, sBT)
                rows, srd, va = (16, 96, 36, 116), WO, vBX
            for q in range(4):
                e("s_add_u32 m0, s65, %d\ns_add_u32 s64, s%d, %d", base + q * 1024, sBT, rows[q] * 1280)
                vm.issue("B%d" % n, "buffer_load_dwordx4 v%d, s[%d:%d], s64 offen lds", va, srd, srd + 3)
            adv(sTB, n)

        def atile(n):
            base = (n % 3) * r.aslot
            e("s_mul_i32 s65, s%d, %d\ns_mul_i32 s66, s%d, %d", sW, r.rt * 1024, sRT0, RT_STRIDE)
            if n < 16:
                e("s_lshl_b32 s%d, s%d, 2\ns_add_u32 s%d, s%d, s%d", sAT, sTA, sAT, sAT, sW)
                if n >= 12:
                    e("s_add_u32 s%d, s%d, 48", sAT, sAT)
            else:
                e("s_add_u32 s%d, s%d, 64", sAT, sW)
            e("s_lshl_b32 s%d, s%d, 10\ns_add_u32 s%d, s%d, s66", sAT, sAT, sAT, sAT)
            for k in range(r.rt):
                e("s_add_u32 m0, s65, %d\ns_add_u32 s64, s%d, %d", base + k * 1024, sAT, k * RT_STRIDE)
                vm.issue("A%d" % n, "buffer_load_dwordx4 v%d, s[%d:%d], s64 offen sc1 lds", vL16, WS, WS + 3)
            adv(sTA, n)

        def xotile():
            e("s_mul_i32 s66, s%d, 20480\ns_lshl_b32 s65, s%d, 7\ns_add_u32 s66, s66, s65\ns_mul_i32 s65, s%d, 10240\ns_add_u32 s66, s66, s65",
              sRT0, sCBG, sW)
            for j in range(r.rt // 2):
                e("s_add_u32 m0, s%d, %d\ns_add_u32 s64, s66, %d", sW1K, r.xo + j * 4096, j * 40960)
                vm.issue("XO", "buffer_load_dwordx4 v%d, s[%d:%d], s64 offen lds", vB2, X, X + 3)

        vm.wait("t0")
        e("s_barrier")
        self.stamp(2)
        tile(2)
        l1, l3, lj = (e.newlabel("svc") for _ in range(3))
        e("v_mov_b32 v%d, 0x%x\nv_mov_b32 v%d, 0", vT, OOB, vU)
        e("s_cmp_eq_u32 s%d, 1\ns_cbranch_scc1 %s\ns_cmp_ge_u32 s%d, 2\ns_cbranch_scc1 %s", sW, l1, sW, lj)
        e("v_add_u32 v1, %d, v%d", r.svc, vL4)
        for g in range(16):
            e("ds_read_b32 v%d, v1 offset:%d", 32 + g, g * 256)
        e("s_cmp_ge_u32 s%d, 27\ns_cbranch_scc1 %s", sI, l3)
        e("s_mul_i32 s64, s%d, 52\ns_lshr_b32 s64, s64, 8\ns_mul_i32 s64, s64, 320\ns_lshl_b32 s65, s%d, 6\ns_add_u32 s64, s64, s65", sI, sI)
        e("s_mul_i32 s65, s%d, 320\ns_add_u32 s64, s64, s65", sB_)
        e("s_mul_i32 s65, s%d, 768\ns_lshl_b32 s66, s%d, 6\ns_add_u32 s65, s65, s66\ns_add_u32 s65, s65, 960", sB_, sI)
        e("s_cmp_ge_u32 s%d, 15\ns_cselect_b32 s64, s65, s64\ns_lshl_b32 s64, s64, 2", sI)
        e("s_mul_i32 s65, s%d, %d\ns_add_u32 s64, s64, s65\ns_add_u32 s64, s64, 0x%x\nv_add_u32 v%d, s64, v%d", sP, CSUM_Q, WS_CSUM, vT, vL4)
        e.label(l3)
        e("s_waitcnt lgkmcnt(0)")
        for st in (8, 4, 2, 1):
            for g in range(st):
                e("v_add_f32 v%d, v%d, v%d", 32 + g, 32 + g, 32 + g + st)
        e("v_mov_b32 v%d, v32\ns_branch %s", vU, lj)
        e.label(l1)
        e("v_add_u32 v1, %d, v%d\nds_read_b32 v%d, v1", r.svc2, vL4, vU)
        e("s_lshl_b32 s64, s%d, 4\ns_add_u32 s64, s64, s%d\ns_lshl_b32 s64, s64, 7\ns_add_u32 s64, s64, 0x%x", sRB, sC16, WS_STATS)
        e("v_add_u32 v1, s64, v%d\nv_cmp_gt_u32 vcc, 32, v0\nv_cndmask_b32 v%d, v%d, v1, vcc\ns_waitcnt lgkmcnt(0)", vL4, vT, vT)
        e.label(lj)
        vm.issue("svc", "buffer_store_dword v%d, v%d, s[%d:%d], 0 offen sc1", vU, vT, WS, WS + 3)

        for t in range(10):
            n = t + 1
            if n <= 9:
                vm.wait("t%d" % n)
            if n == 3:
                vm.wait("svc")
                self.spin(vm, vPOLL, vGF, DBG, 1, "pg")
            if n == 7:
                self.spin(vm, vPOLL, vSF, WS, 1, "ps")
            if n == 9:
                vm.wait("cs")
                e("v_add_f32 v32, v32, v33\nv_add_f32 v34, v34, v35\nv_add_f32 v32, v32, v34")
                e("s_lshl_b32 s64, s%d, 8\ns_add_u32 s64, s64, %d\nv_add_u32 v1, s64, v%d\nds_write_b32 v1, v32\ns_waitcnt lgkmcnt(0)", sW, r.cs, vL4)
            e("s_barrier")
            if n in (1, 4, 7):
                self.stamp({1: 6, 4: 14, 7: 15}[n])
            if n == 1:
                vm.issue("pg", "buffer_load_dword v%d, v%d, s[%d:%d], 0 offen sc1", vPOLL, vGF, DBG, DBG + 3)
            if n == 3:
                self.set_flag(vm, vMY, 0, vU)
            if n == 5:
                vm.issue("ps", "buffer_load_dword v%d, v%d, s[%d:%d], 0 offen sc1", vPOLL, vSF, WS, WS + 3)
            if n + 2 <= 9:
                tile(n + 2)
            if n == 7:
                e("s_lshl_b32 s64, s%d, 11\ns_lshl_b32 s65, s%d, 9\ns_add_u32 s64, s64, s65\ns_add_u32 s64, s64, 0x%x", sRB, sW, WS_STATS)
                e("s_add_u32 m0, s65, %d\ns_mov_b32 exec_hi, 0", r.st)
                vm.issue("cs", "buffer_load_dwordx4 v%d, s[%d:%d], s64 offen sc1 lds", vL16, WS, WS + 3)
                e("s_mov_b64 exec, -1")
                for q in range(4):
                    e("s_mov_b32 s64, %d", q * CSUM_Q)
                    vm.issue("cs", "buffer_load_dword v%d, v%d, s[%d:%d], s64 offen sc1", 32 + q, vCSA, WS, WS + 3)
            if n == 8:
                for j in range(4 if r is F else 3):
                    btile(j)
            if n == 9 and r is Q:
                btile(3)
                btile(4)
        self.stamp(3)
        if r is F:
            xotile()
            e("s_barrier")
            self.set_flag(vm, vMY, 1, vU)
            self.spin(vm, vPOLL, vHF, WS, 1, None)
            self.stamp(4)
            e("s_barrier")
        else:
            self.spin(vm, vPOLL, vHF, WS, 1, None)
            self.stamp(4)
            e("s_barrier")
            self.stamp(5)
            e("s_lshl_b32 s64, s%d, 11\ns_add_u32 s64, s64, %d\nv_lshl_add_u32 v1, v0, 5, s64", sW, Q.scat)
            e("ds_read_b128 v[32:35], v1\nds_read_b128 v[36:39], v1 offset:16\nds_read_b128 v[40:43], v1 offset:6720\nds_read_b128 v[44:47], v1 offset:6736")
            e("s_mul_i32 s64, s%d, %d\ns_waitcnt lgkmcnt(0)", sRB, KVP_RB)
            for j in range(4):
                e("v_pk_add_f32 v[%d:%d], v[%d:%d], v[%d:%d]", 32 + 2 * j, 33 + 2 * j, 32 + 2 * j, 33 + 2 * j, 40 + 2 * j, 41 + 2 * j)
            for j in range(4):
                e("v_cvt_pk_bf16_f32 v%d, v%d, v%d", 48 + j, 32 + 2 * j, 33 + 2 * j)
            vm.issue("kvp", "buffer_store_dwordx4 v[48:51], v%d, s[%d:%d], s64 offen sc1", vKVA, WS, WS + 3)
        for n in range(3):
            atile(n)

        for n in range(17):
            if r is Q and n == KV_CHECK:
                self.spin(vm, vPOLL, vKF, WS, 1, "pk")
            if r is Q and n == O_STAGE:
                vm.wait("kvl")
                e("s_mov_b32 s64, 0x3f80\ns_mov_b32 s65, 0x3f800000")
                for j in range(8):
                    e("v_mov_b32 v%d, 0", 16 + j)
                for rb in range(16):
                    for j in range(4):
                        e("v_dot2c_f32_bf16 v%d, s64, v%d\nv_dot2c_f32_bf16 v%d, s65, v%d", 16 + 2 * j, 32 + 4 * rb + j, 17 + 2 * j, 32 + 4 * rb + j)
                for j in range(4):
                    e("v_cvt_pk_bf16_f32 v%d, v%d, v%d", 24 + j, 16 + 2 * j, 17 + 2 * j)
                e("s_lshl_b32 s64, s%d, 10\ns_add_u32 s64, s64, %d\nv_add_u32 v1, s64, v%d", sW, Q.kvsum, vL16)
                e("s_cmp_eq_u32 s%d, 3\ns_cselect_b32 exec_lo, 0x3ffff, -1\ns_cselect_b32 exec_hi, 0, -1", sW)
                e("ds_write_b128 v1, v[24:27]\ns_mov_b64 exec, -1\ns_waitcnt lgkmcnt(0)")
            if n == 10:
                self.spin(vm, vPOLL, vOF, WS, 1, "po")
                self.stamp(10)
            vm.wait("A%d" % n)
            if n == 16:
                vm.wait_all()
            e("s_barrier")
            if n in (0, 3, 9, 12, 16):
                self.stamp({0: 7, 3: 8, 9: 9, 12: 11, 16: 12}[n])
            if r is Q and n == 0:
                self.set_flag(vm, vMY, 1, vU)
                xotile()
            if r is Q and n == KV_CHECK - 1:
                vm.issue("pk", "buffer_load_dword v%d, v%d, s[%d:%d], 0 offen sc1", vPOLL, vKF, WS, WS + 3)
            if r is Q and n == KV_CHECK:
                for rb in range(16):
                    e("s_mov_b32 s64, %d", rb * KVP_RB)
                    vm.issue("kvl", "buffer_load_dwordx4 v[%d:%d], v%d, s[%d:%d], s64 offen sc1", 32 + 4 * rb, 35 + 4 * rb, vKVA, WS, WS + 3)
            if r is Q and n == O_FLAG:
                self.set_flag(vm, vMY, 2, vU)
            if n == 9:
                vm.issue("po", "buffer_load_dword v%d, v%d, s[%d:%d], 0 offen sc1", vPOLL, vOF, WS, WS + 3)
            nb = n - 1 + r.nb
            if n >= 1:
                if n + 2 <= 16:
                    atile(n + 2)
                if nb <= 16:
                    btile(nb)
        e("v_mov_b32 v7, v%d", vB2)
        e("s_branch L_final_" + r.name)

    def service(self, r):
        e = self.e
        e("s_lshl_b32 s64, s%d, 4\ns_add_u32 s64, s64, s%d\ns_lshl_b32 s64, s64, 2\ns_add_u32 s64, s64, s%d\ns_lshl_b32 s64, s64, 1", sRB, sC16, sW)
        e("v_lshrrev_b32 v1, 5, v0\nv_add_u32 v1, s64, v1\nv_mul_u32_u24 v1, 1280, v1\nv_and_b32 v2, 31, v0\nv_lshl_add_u32 v1, v2, 4, v1")
        e("v_mov_b32 v3, 0x%x\nv_cmp_gt_u32 vcc, 16, v2\nv_cndmask_b32 v3, v3, v1, vcc", OOB)
        e("s_mul_i32 s64, s%d, 52\ns_lshr_b32 s64, s64, 8\ns_mul_i32 s64, s64, 320\ns_lshl_b32 s65, s%d, 6\ns_add_u32 s64, s64, s65", sI, sI)
        e("s_mul_i32 s65, s%d, 320\ns_add_u32 s64, s64, s65", sB_)
        e("s_mul_i32 s65, s%d, 768\ns_lshl_b32 s66, s%d, 6\ns_add_u32 s65, s65, s66\ns_sub_u32 s65, s65, 960", sB_, sI)
        e("s_cmp_ge_u32 s%d, 15\ns_cselect_b32 s64, s65, s64\ns_movk_i32 s65, 3840\ns_cselect_b32 s65, 3072, s65\ns_lshl_b32 s64, s64, 1", sI)
        e("s_mul_i32 s66, s%d, 160\ns_lshl_b32 s67, s%d, 3\ns_add_u32 s66, s66, s67", sP, sW)
        e("v_lshrrev_b32 v4, 3, v0\nv_add_u32 v4, s66, v4\nv_mul_lo_u32 v4, v4, s65\nv_and_b32 v5, 7, v0\nv_lshl_add_u32 v4, v5, 4, v4\nv_add_u32 v4, s64, v4")
        e("s_lshl_b32 s65, s65, 5")
        e("s_waitcnt lgkmcnt(0)")
        self.srd(X, PX, 2621440)
        e("s_cmp_ge_u32 s%d, 15\ns_cselect_b32 s%d, s%d, s%d\ns_cselect_b32 s%d, s%d, s%d", sI, TMPD, PW1, PQKV, TMPD + 1, PW1 + 1, PQKV + 1)
        e("s_mov_b32 s66, %d\ns_cselect_b32 s%d, %d, s66\ns_mov_b32 s%d, 0x20000", 640 * 1920 * 2, TMPD + 2, 640 * 1536 * 2, TMPD + 3)
        e("s_cmp_ge_u32 s%d, 27\ns_cselect_b32 s%d, 0, s%d", sI, TMPD + 2, TMPD + 2)
        e("buffer_load_dwordx4 v[32:35], v1, s[%d:%d], 0 offen", X, X + 3)
        e("buffer_load_dwordx4 v[36:39], v1, s[%d:%d], 0 offen offset:512", X, X + 3)
        e("buffer_load_dwordx4 v[40:43], v3, s[%d:%d], 0 offen offset:1024", X, X + 3)
        e("s_mov_b32 s66, 0")
        for j in range(5):
            e("buffer_load_dwordx4 v[%d:%d], v4, s[%d:%d], s66 offen", 44 + 4 * j, 47 + 4 * j, TMPD, TMPD + 3)
            if j < 4:
                e("s_add_u32 s66, s66, s65")

    def service_finish(self, r):
        e = self.e
        e("s_mov_b32 s64, 0x3f803f80\ns_mov_b32 s65, 0x3f80\ns_mov_b32 s66, 0x3f800000")
        for k in range(10):
            e("v_mov_b32 v%d, 0", 64 + k)
        e("s_waitcnt vmcnt(5)")
        for k in range(12):
            e("v_dot2c_f32_bf16 v72, s64, v%d\nv_dot2c_f32_bf16 v73, v%d, v%d", 32 + k, 32 + k, 32 + k)
        for ror in (8, 4, 2, 1):
            e("v_add_f32_dpp v72, v72, v72 row_ror:%d row_mask:0xf bank_mask:0xf", ror)
            e("v_add_f32_dpp v73, v73, v73 row_ror:%d row_mask:0xf bank_mask:0xf", ror)
        e("ds_swizzle_b32 v74, v72 offset:0x401F\nds_swizzle_b32 v75, v73 offset:0x401F")
        e("s_waitcnt vmcnt(0)")
        for j in range(5):
            for k in range(4):
                e("v_dot2c_f32_bf16 v%d, s65, v%d\nv_dot2c_f32_bf16 v%d, s66, v%d", 64 + 2 * k, 44 + 4 * j + k, 65 + 2 * k, 44 + 4 * j + k)
        e("s_waitcnt lgkmcnt(0)")
        e("v_add_f32 v72, v72, v74\nv_add_f32 v73, v73, v75")
        e("v_mul_f32 v72, 0x%x, v72\nv_mul_f32 v73, 0x%x, v73\nv_fma_f32 v73, -v72, v72, v73\nv_max_f32 v73, 0, v73\nv_add_f32 v73, 0x%x, v73",
          f2u(1.0 / 640), f2u(1.0 / 640), f2u(1e-5))
        e("v_rsq_f32 v74, v73\nv_sqrt_f32 v75, v73")
        for k in range(8):
            e("v_add_f32_dpp v%d, v%d, v%d row_ror:8 row_mask:0xf bank_mask:0xf", 64 + k, 64 + k, 64 + k)
        e("s_lshl_b32 s64, s%d, 3\ns_add_u32 s64, s64, %d\nv_lshrrev_b32 v1, 5, v0\nv_lshl_add_u32 v1, v1, 2, s64", sW, r.svc2)
        e("ds_write_b32 v1, v72\nds_write_b32 v1, v74 offset:32\nds_write_b32 v1, v75 offset:64")
        e("s_lshl_b32 s64, s%d, 10\ns_add_u32 s64, s64, %d\nv_lshrrev_b32 v1, 4, v0\nv_lshl_add_u32 v1, v1, 8, s64", sW, r.svc)
        e("v_and_b32 v76, 7, v0\nv_lshl_add_u32 v1, v76, 5, v1")
        e("ds_write_b128 v1, v[64:67]\nds_write_b128 v1, v[68:71] offset:16")

    def compute(self, r):
        e = self.e
        sRG, sCG, sSL, sDL, sN = 73, 74, 75, 76, 77
        e.label("L_compute_" + r.name)
        if r is F:
            e("s_cmp_lg_u32 s2, 0\ns_cbranch_scc1 L_not_leader\ns_waitcnt lgkmcnt(0)")
            self.srd(WS, PWS, WS_SIZE)
            self.srd(DBG, PDBG, 256)
            e("s_lshl_b32 s64, s%d, 13\ns_add_u32 s64, s64, 0x%x\nv_lshlrev_b32 v1, 7, v0", sW, WS_FLAGS)
            e("v_mov_b32 v4, 0\nv_mov_b32 v5, 0\nv_mov_b32 v6, 0\nv_mov_b32 v7, 0")
            e("buffer_store_dwordx4 v[4:7], v1, s[%d:%d], s64 offen sc1", WS, WS + 3)
            e("s_lshl_b32 s64, s%d, 2\nv_mov_b32 v1, s64\nv_mov_b32 v2, 1\ns_waitcnt vmcnt(0)\ns_mov_b64 exec, 1", sW)
            e("buffer_store_dword v2, v1, s[%d:%d], 0 offen sc1\ns_mov_b64 exec, -1", DBG, DBG + 3)
            e.label("L_not_leader")
        self.service(r)
        e("s_lshr_b32 s%d, s%d, 1\ns_and_b32 s%d, s%d, 1", sRG, sW, sCG, sW)
        self.srd(WS, PWS, WS_SIZE)
        self.srd(OUT, POUT, 2621440)
        self.phase2_ids(r)
        nct = r.nct
        Wb = (32, 64) if r is Q else (32, 56)
        Xb = (96, 112)
        acc = (lambda ct, mt: 128 + (ct * 4 + mt) * 4)
        for k in range(nct * 16):
            e("v_mov_b32 v%d, 0", 128 + k)
        self.service_finish(r)
        vG, vJ = 30, 31
        e("v_lshrrev_b32 v%d, 4, v0\nv_and_b32 v%d, 15, v0", vG, vJ)
        e("v_lshrrev_b32 v1, 1, v%d\nv_xor_b32 v1, v1, v%d\nv_lshlrev_b32 v1, 4, v1\nv_lshl_add_u32 v1, v%d, 7, v1", vJ, vG, vJ)
        e("s_lshl_b32 s64, s%d, 13\nv_add_u32 v2, s64, v1\nv_xor_b32 v3, 64, v2", sRG)
        if r is Q:
            e("v_and_b32 v1, 1, v%d\nv_lshlrev_b32 v1, 7, v1\nv_lshl_add_u32 v1, v%d, 12, v1", vG, vG)
            e("v_lshrrev_b32 v8, 2, v%d\nv_mul_u32_u24 v8, 480, v8\nv_add_u32 v1, v1, v8", vJ)
            e("s_mul_i32 s64, s%d, 80\ns_add_u32 s64, s64, 16384\nv_add_u32 v1, s64, v1", sCG)
            e("v_and_b32 v8, 3, v%d\nv_lshl_add_u32 v4, v8, 3, v1", vJ)
            e("v_and_b32 v9, 1, v8\nv_mul_u32_u24 v9, 40, v9\nv_add_u32 v6, v1, v9\nv_add_u32 v6, 32, v6")
            e("v_lshrrev_b32 v9, 1, v8\nv_mul_u32_u24 v9, 160, v9\nv_add_u32 v5, v6, v9\nv_add_u32 v5, 160, v5")
            waddr = [(4, 0), (4, 40), (6, 0), (4, 160), (4, 200), (5, 0), (4, 320), (4, 360)]
            wkk, wrd, aregs = 16384, 1920, [2, 3, 4, 5, 6]
        else:
            e("v_mul_u32_u24 v1, 3072, v%d\nv_lshrrev_b32 v10, 2, v%d\nv_lshl_add_u32 v1, v10, 7, v1", vG, vJ)
            e("v_and_b32 v10, 3, v%d\nv_lshl_add_u32 v1, v10, 3, v1\nv_add_u32 v1, 16384, v1", vJ)
            e("v_and_b32 v10, 1, v%d\nv_lshlrev_b32 v10, 1, v10\nv_bfe_u32 v11, v%d, 3, 1\nv_or_b32 v10, v10, v11", vG, vJ)
            for jj in range(6):
                e("s_mul_i32 s64, s%d, 6\ns_add_u32 s64, s64, %d\ns_and_b32 s65, s64, 3\ns_lshr_b32 s64, s64, 2\ns_lshl_b32 s64, s64, 10", sCG, jj)
                e("v_xor_b32 v11, s65, v10\nv_lshl_add_u32 v11, v11, 5, v1\nv_add_u32 v%d, s64, v11", 4 + jj)
            waddr = [(4 + jj, 0) for jj in range(6)]
            wkk, wrd, aregs = 12288, 512, [2, 3, 4, 5, 6, 7, 8, 9]

        def reads(buf, kk):
            out = []
            for mt in range(4):
                out.append("ds_read_b128 %s, v%d offset:%d" % (vr(Xb[buf] + 4 * mt, 4), 2 + kk, 2048 * mt))
            for ct in range(nct):
                a, off = waddr[ct]
                for rd in range(2):
                    out.append("ds_read_b64_tr_b16 %s, v%d offset:%d" % (vr(Wb[buf] + 4 * ct + 2 * rd, 2), a, off + kk * wkk + rd * wrd))
            return out

        def mfmas(buf):
            out = []
            for ct in range(nct):
                for mt in range(4):
                    w, x, d = vr(Wb[buf] + 4 * ct, 4), vr(Xb[buf] + 4 * mt, 4), vr(acc(ct, mt), 4)
                    a, b = (x, w) if (r is Q and ct >= 3) else (w, x)
                    out.append("v_mfma_f32_16x16x32_bf16 %s, %s, %s, %s" % (d, a, b, d))
            return out

        e("s_mov_b32 s%d, 0\ns_mov_b32 s%d, 10", sSL, sN)
        e("s_waitcnt lgkmcnt(0)\ns_barrier")
        self.stamp(2)
        for l in reads(0, 0):
            e(l)
        loop = "L_k_" + r.name
        e.label(loop)
        e("s_waitcnt lgkmcnt(0)")
        for l in interleave(mfmas(0), reads(1, 1)):
            e(l)
        e("s_mov_b32 s%d, %d\ns_cmp_eq_u32 s%d, 0\ns_cselect_b32 s%d, %d, s%d\ns_cselect_b32 s64, 3, s%d\ns_sub_u32 s%d, s64, 1",
          sDL, -r.slot & 0xffffffff, sSL, sDL, 2 * r.slot, sDL, sSL, sSL)
        e("s_waitcnt lgkmcnt(0)\ns_barrier")
        upd = ["v_add_u32 v%d, s%d, v%d" % (a, sDL, a) for a in aregs]
        for l in interleave(mfmas(1), ["\n".join(upd[:4]), "\n".join(upd[4:])] + reads(0, 0)):
            e(l)
        e("s_sub_u32 s%d, s%d, 1\ns_cmp_lg_u32 s%d, 0\ns_cbranch_scc1 %s", sN, sN, sN, loop)
        e("s_waitcnt lgkmcnt(0)")
        self.stamp(3)
        if r is F:
            self.epilogue_f(acc, sRG, sCG, vG, vJ)
        else:
            self.epilogue_q(acc, sRG, sCG, vG, vJ)
        self.phase2(r, sRG, sCG, vG, vJ)

    def epilogue_f(self, acc, sRG, sCG, vG, vJ):
        e = self.e
        r = F
        CSr, PAR, T = 32, 56, 72
        e("s_lshl_b32 s64, s%d, 10\ns_add_u32 s64, s64, %d\nv_lshrrev_b32 v1, 3, v%d\nv_lshl_add_u32 v1, v1, 7, s64\nv_and_b32 v2, 7, v%d\nv_lshl_add_u32 v1, v2, 2, v1",
          sRG, r.st, vJ, vJ)
        for mt in range(4):
            e("ds_read2_b32 v[%d:%d], v1 offset0:%d offset1:%d\nds_read_b32 v%d, v1 offset:%d",
              PAR + 4 * mt, PAR + 4 * mt + 1, mt * 64, mt * 64 + 8, PAR + 4 * mt + 2, mt * 256 + 64)
        e("s_mul_i32 s64, s%d, 384\ns_add_u32 s64, s64, %d\nv_lshl_add_u32 v2, v%d, 4, s64", sCG, r.cs, vG)
        for jj in range(6):
            e("ds_read_b128 %s, v2 offset:%d", vr(CSr + 4 * jj, 4), jj * 64)
        e("s_lshl_b32 s64, s%d, 3\ns_lshl_b32 s65, s%d, 2\ns_add_u32 s64, s64, s65\ns_mul_i32 s66, s64, %d", sRB, sRG, RT_STRIDE)
        e("s_mul_i32 s64, s%d, 6\ns_mul_i32 s65, s%d, 3\ns_add_u32 s64, s64, s65\ns_lshl_b32 s64, s64, 10\ns_add_u32 s66, s66, s64", sGRP, sCG)
        e("v_lshlrev_b32 v3, 4, v0\ns_waitcnt lgkmcnt(0)")
        for mt in range(4):
            e("v_sub_f32 v%d, 0, v%d\nv_mul_f32 v%d, 0x%x, v%d", PAR + 4 * mt, PAR + 4 * mt, PAR + 4 * mt + 1, f2u(-LOG2E), PAR + 4 * mt + 1)
        k = 0
        for mt in range(4):
            p = vr(PAR + 4 * mt, 2)
            sg = vr(PAR + 4 * mt + 2, 2)
            for j in range(3):
                t = T + 8 * (k % 2)
                o = T + 16 + 4 * (k % 4)
                k += 1
                prs = [(acc(2 * j + h, mt) + 2 * q, CSr + 4 * (2 * j + h) + 2 * q, t + 4 * h + 2 * q) for h in range(2) for q in range(2)]
                for a, c, w in prs:
                    e("v_pk_fma_f32 %s, %s, %s, %s op_sel_hi:[1,0,1]", vr(a, 2), vr(c, 2), p, vr(a, 2))
                for a, c, w in prs:
                    e("v_pk_mul_f32 %s, %s, %s op_sel:[0,1] op_sel_hi:[1,1]", vr(w, 2), vr(a, 2), p)
                for i in range(8):
                    e("v_exp_f32 v%d, v%d", t + i, t + i)
                for a, c, w in prs:
                    e("v_pk_fma_f32 %s, %s, %s, %s op_sel_hi:[1,0,0]", vr(w, 2), vr(w, 2), sg, sg)
                for i in range(8):
                    e("v_rcp_f32 v%d, v%d", t + i, t + i)
                for a, c, w in prs:
                    e("v_pk_mul_f32 %s, %s, %s", vr(w, 2), vr(w, 2), vr(a, 2))
                for i in range(4):
                    e("v_cvt_pk_bf16_f32 v%d, v%d, v%d", o + i, t + 2 * i, t + 2 * i + 1)
                e("buffer_store_dwordx4 %s, v3, s[%d:%d], s66 offen offset:%d sc1", vr(o, 4), WS, WS + 3, j * 1024)
            if mt < 3:
                e("s_add_u32 s66, s66, %d", RT_STRIDE)
        self.stamp(4)
        e("s_waitcnt vmcnt(0)")
        self.stamp(5)
        e("s_barrier\ns_barrier")

    def phi(self, prs, eps_pair, t):
        e = self.e
        for i, (u, d) in enumerate(prs):
            e("v_pk_mul_f32 %s, %s, s[78:79]", vr(t + 2 * i, 2), vr(u, 2))
        for i in range(2 * len(prs)):
            e("v_exp_f32_e64 v%d, v%d clamp", t + i, t + i)
        for i, (u, d) in enumerate(prs):
            e("v_max_f32 v%d, s80, v%d\nv_max_f32 v%d, s80, v%d", t + 8 + 2 * i, u, t + 9 + 2 * i, u + 1)
        for i, (u, d) in enumerate(prs):
            e("v_pk_add_f32 %s, %s, %s", vr(t + 2 * i, 2), vr(t + 2 * i, 2), vr(t + 8 + 2 * i, 2))
        for i, (u, d) in enumerate(prs):
            e("v_cvt_pk_bf16_f32 v%d, v%d, v%d", d, t + 2 * i, t + 2 * i + 1)

    def epilogue_q(self, acc, sRG, sCG, vG, vJ):
        e = self.e
        r = Q
        PAR, CSK, CSV, CSX, T, XB, P = 32, 64, 66, 68, 70, 92, 100
        e("s_mov_b32 s78, 0x%x\ns_mov_b32 s79, 0x%x\ns_mov_b32 s80, 0x%x\ns_mov_b32 s81, 0x%x", f2u(LOG2E), f2u(LOG2E), f2u(1e-6), f2u(1e-6))
        e("s_lshl_b32 s64, s%d, 10\ns_add_u32 s64, s64, %d\nv_lshrrev_b32 v1, 1, v%d\nv_lshl_add_u32 v1, v1, 7, s64\nv_and_b32 v2, 1, v%d\nv_lshl_add_u32 v1, v2, 4, v1",
          sRG, r.st, vG, vG)
        for mt in range(4):
            e("ds_read_b128 %s, v1 offset:%d\nds_read_b128 %s, v1 offset:%d", vr(PAR + 8 * mt, 4), mt * 256, vr(PAR + 8 * mt + 4, 4), mt * 256 + 32)
        e("s_mul_i32 s64, s%d, 160\ns_add_u32 s64, s64, %d\nv_lshl_add_u32 v2, v%d, 2, s64", sCG, r.cs, vJ)
        e("ds_read2_b32 v[%d:%d], v2 offset0:80 offset1:100\nds_read2_b32 v[%d:%d], v2 offset0:160 offset1:180", CSK, CSK + 1, CSV, CSV + 1)
        e("v_lshrrev_b32 v3, 3, v%d\nv_mul_u32_u24 v3, 320, v3\nv_bfe_u32 v4, v%d, 2, 1\nv_mul_u32_u24 v4, 80, v4\nv_add_u32 v3, v3, v4", vJ, vJ)
        e("v_and_b32 v4, 3, v%d\nv_lshl_add_u32 v3, v4, 2, v3\nv_add_u32 v3, s64, v3\nds_read_b32 v%d, v3 offset:384", vJ, CSX)
        e("v_cmp_gt_u32 s[82:83], 8, v%d\nv_mov_b32 v4, 0\nv_mov_b32 v5, s80\nv_cndmask_b32 v%d, v4, v5, s[82:83]", vJ, CSX + 1)
        e("v_mov_b32 v6, 0x3f803f80\ns_waitcnt lgkmcnt(0)")
        for mt in range(4):
            for q in range(2):
                m, s = vr(PAR + 8 * mt + 2 * q, 2), vr(PAR + 8 * mt + 4 + 2 * q, 2)
                e("v_pk_mul_f32 %s, %s, %s neg_lo:[1,0] neg_hi:[1,0]", m, m, s)

        def norm(ct, mt, cs, hi, eps):
            sel = "op_sel:[0,%d%s] op_sel_hi:[1,%d%s]"
            for q in range(2):
                rm, t = vr(PAR + 8 * mt + 2 * q, 2), vr(T + 16 + 2 * q, 2)
                if eps == "s":
                    e("v_pk_fma_f32 %s, %s, %s, s[80:81] " + sel % (hi, ",0", hi, ",1"), t, rm, vr(cs, 2))
                elif eps == "v":
                    e("v_pk_fma_f32 %s, %s, %s, %s " + sel % (0, ",1", 0, ",1"), t, rm, vr(cs, 2), vr(cs, 2))
                else:
                    e("v_pk_mul_f32 %s, %s, %s " + sel % (hi, "", hi, ""), t, rm, vr(cs, 2))
            for q in range(2):
                a = vr(acc(ct, mt) + 2 * q, 2)
                e("v_pk_fma_f32 %s, %s, %s, %s", a, a, vr(PAR + 8 * mt + 4 + 2 * q, 2), vr(T + 16 + 2 * q, 2))

        for m in range(2):
            for h in range(2):
                mt = 2 * m + h
                for ct, hi in ((6, 0), (7, 1)):
                    norm(ct, mt, CSV, hi, None)
                    for q in range(2):
                        e("v_cvt_pk_bf16_f32 v%d, v%d, v%d", acc(ct, 2 * m) + 2 * h + q, acc(ct, mt) + 2 * q, acc(ct, mt) + 2 * q + 1)
                norm(3, mt, CSK, 0, "s")
                norm(4, mt, CSK, 1, "s")
                self.phi([(acc(ct, mt) + 2 * q, acc(ct, 2 * m) + 2 * h + q) for ct in (3, 4) for q in range(2)], None, T)
                norm(5, mt, CSX, 0, "v")
                for q in range(2):
                    e("v_cvt_pk_bf16_f32 v%d, v%d, v%d", T + 18 + q, acc(5, mt) + 2 * q, acc(5, mt) + 2 * q + 1)
                for q in range(2):
                    e("v_cndmask_b32 v%d, v%d, v6, s[82:83]", XB + 4 * m + 2 * h + q, T + 18 + q)
                self.phi([(acc(5, mt) + 2 * q, acc(5, 2 * m) + 2 * h + q) for q in range(2)], None, T)
            KA, KB, XA, VA, VB = (vr(acc(ct, 2 * m), 4) for ct in (3, 4, 5, 6, 7))
            xb = vr(XB + 4 * m, 4)
            for i, (a, b) in enumerate(((KA, VA), (KA, xb), (XA, VA), (KB, VB), (KB, xb), (XA, VB), (XA, xb))):
                d = vr(P + 4 * i, 4)
                e("v_mfma_f32_16x16x32_bf16 %s, %s, %s, %s", d, a, b, d if m else "0")
        e("s_mul_i32 s64, s%d, 6720\ns_mul_i32 s65, s%d, 3360\ns_add_u32 s64, s64, s65\ns_add_u32 s64, s64, %d", sRG, sCG, r.scat)
        e("v_mul_u32_u24 v1, 80, v%d\nv_add_u32 v1, s64, v1\nv_lshl_add_u32 v2, v%d, 4, v1", vJ, vG)
        e("v_and_b32 v3, 3, v%d\nv_mul_u32_u24 v3, 80, v3\nv_add_u32 v3, 1280, v3\nv_mov_b32 v4, 1600\nv_cmp_eq_u32 vcc, 0, v%d\nv_cndmask_b32 v3, v3, v4, vcc", vJ, vJ)
        e("v_add_u32 v3, s64, v3\nv_lshl_add_u32 v4, v%d, 4, v3\nv_mul_u32_u24 v5, 1680, v%d\nv_add_u32 v1, v1, v5\nv_add_u32 v3, v3, v5", vG, vG)

        def mask(fn):
            m = sum(1 << l for l in range(64) if fn(l >> 4, l & 15))
            e("s_mov_b32 exec_lo, 0x%x\ns_mov_b32 exec_hi, 0x%x", m & 0xffffffff, m >> 32)
        ina = lambda n: n == 0 or 8 <= n < 12
        inb = lambda n: n == 0 or 12 <= n
        e("ds_write_b128 v2, %s\nds_write_b128 v2, %s offset:1680", vr(P, 4), vr(P + 12, 4))
        mask(lambda g, n: ina(n))
        e("ds_write_b128 v4, %s", vr(P + 4, 4))
        mask(lambda g, n: inb(n))
        e("ds_write_b128 v4, %s offset:1680", vr(P + 16, 4))
        mask(lambda g, n: g == 0)
        e("ds_write_b128 v1, %s offset:64", vr(P + 8, 4))
        mask(lambda g, n: g == 1)
        e("ds_write_b128 v1, %s offset:64", vr(P + 20, 4))
        mask(lambda g, n: (g == 0 and ina(n)) or (g == 1 and inb(n)))
        e("ds_write_b128 v3, %s offset:64", vr(P + 24, 4))
        e("s_mov_b64 exec, -1")
        e("s_lshl_b32 s64, s%d, 10\ns_add_u32 s64, s64, %d\nv_lshrrev_b32 v1, 3, v%d\nv_lshl_add_u32 v1, v1, 7, s64\nv_and_b32 v2, 7, v%d\nv_lshl_add_u32 v1, v2, 2, v1",
          sRG, r.st, vJ, vJ)
        for mt in range(4):
            e("ds_read2_b32 v[%d:%d], v1 offset0:%d offset1:%d", PAR + 2 * mt, PAR + 2 * mt + 1, mt * 64, mt * 64 + 8)
        CQ = 40
        e("s_mul_i32 s64, s%d, 160\ns_add_u32 s64, s64, %d\nv_lshl_add_u32 v2, v%d, 4, s64", sCG, r.cs, vG)
        e("ds_read_b128 %s, v2\nds_read_b128 %s, v2 offset:80", vr(CQ, 4), vr(CQ + 4, 4))
        e("v_and_b32 v2, 1, v%d\nv_mul_u32_u24 v2, 80, v2\nv_add_u32 v2, s64, v2\nds_read_b128 %s, v2 offset:64", vG, vr(CQ + 8, 4))
        e("s_waitcnt lgkmcnt(0)\ns_barrier")
        self.stamp(4)
        for mt in range(4):
            e("v_mul_f32_e64 v%d, -v%d, v%d", PAR + 2 * mt, PAR + 2 * mt, PAR + 2 * mt + 1)
        dst = {0: 0, 2: 2, 1: 4}
        for mt in range(4):
            p = vr(PAR + 2 * mt, 2)
            for grp in ((0, 2), (1,)):
                for ct in grp:
                    for q in range(2):
                        e("v_pk_fma_f32 %s, %s, %s, s[80:81] op_sel_hi:[1,0,1]", vr(T + 16 + 2 * q, 2), vr(CQ + 4 * ct + 2 * q, 2), p)
                    for q in range(2):
                        a = vr(acc(ct, mt) + 2 * q, 2)
                        e("v_pk_fma_f32 %s, %s, %s, %s op_sel:[0,1,0] op_sel_hi:[1,1,1]", a, a, p, vr(T + 16 + 2 * q, 2))
                self.phi([(acc(ct, mt) + 2 * q, 8 + 6 * mt + dst[ct] + q) for ct in grp for q in range(2)], None, T)
        self.stamp(5)

    def ostage(self, sRG, sCG):
        e = self.e
        AO, D, T = 160, 184, 232
        vG, vJ = T, T + 1
        e("v_lshrrev_b32 v%d, 4, v0\nv_and_b32 v%d, 15, v0", vG, vJ)
        e("s_mul_i32 s64, s%d, 1680\ns_add_u32 s64, s64, %d", sCG, Q.kvsum)
        e("v_mul_u32_u24 v%d, 40, v%d\nv_add_u32 v%d, s64, v%d", T + 2, vJ, T + 2, T + 2)
        e("v_and_b32 v%d, 3, v%d\nv_mul_u32_u24 v%d, 40, v%d\nv_add_u32 v%d, s64, v%d\nv_add_u32 v%d, 640, v%d", T + 3, vJ, T + 3, T + 3, T + 3, T + 3, T + 3, T + 3)
        e("v_mov_b32 v%d, s64\nv_add_u32 v%d, 800, v%d", T + 4, T + 4, T + 4)
        for k in range(3):
            e("v_lshl_add_u32 v%d, v%d, 3, v%d", T + 5 + k, vG, T + 2 + k)
        for h in range(2):
            for k in range(3):
                lo = AO + 12 * h + 4 * k + (2 if h else 0)
                hi = AO + 12 * h + 4 * k + (0 if h else 2)
                e("v_mov_b32 v%d, 0\nv_mov_b32 v%d, 0", hi, hi + 1)
                e("ds_read_b64 %s, v%d offset:%d", vr(lo, 2), T + 5 + k, 840 * h)
        for h in range(2):
            e("s_mov_b32 exec_lo, 0x%x\ns_mov_b32 exec_hi, 0", 0xffff << (16 * h))
            for k in range(3):
                hi = AO + 12 * h + 4 * k + (0 if h else 2)
                e("ds_read_b64 %s, v%d offset:%d", vr(hi, 2), T + 2 + k, 840 * h + 32)
        e("s_mov_b64 exec, -1")
        e("s_lshl_b32 s64, s%d, 3\ns_lshl_b32 s65, s%d, 2\ns_add_u32 s64, s64, s65\ns_mul_i32 s66, s64, %d", sRB, sRG, RT_STRIDE)
        e("s_lshl_b32 s64, s%d, 1\ns_add_u32 s64, s64, s%d\ns_lshl_b32 s65, s64, 10\ns_add_u32 s67, s66, s65\ns_add_u32 s67, s67, %d", sGRP, sCG, 48 * 1024)
        e("s_lshr_b32 s65, s64, 2\ns_lshl_b32 s65, s65, 10\ns_and_b32 s64, s64, 3\ns_lshl_b32 s64, s64, 8\ns_add_u32 s66, s66, s65\ns_add_u32 s66, s66, s64\ns_add_u32 s66, s66, %d", 64 * 1024)
        e("v_lshlrev_b32 v%d, 4, v0\ns_waitcnt lgkmcnt(0)", T + 8)
        for half in range(2):
            for i in range(2):
                mt = 2 * half + i
                for h in range(2):
                    for k in range(3):
                        e("v_mfma_f32_16x16x32_bf16 %s, %s, %s, 0", vr(D + 24 * i + 12 * h + 4 * k, 4), vr(AO + 12 * h + 4 * k, 4), vr(8 + 6 * mt + 2 * h, 4))
            for i in range(2):
                d = D + 24 * i
                o = T + 10 + 0
                for h in range(2):
                    e("v_add_f32 v%d, 0x%x, v%d", d + 12 * h + 8, f2u(1e-6), d + 12 * h + 8)
                for h in range(2):
                    e("v_rcp_f32 v%d, v%d", d + 12 * h + 8, d + 12 * h + 8)
                for h in range(2):
                    for q in range(4):
                        a = vr(d + 12 * h + 2 * q, 2)
                        e("v_pk_mul_f32 %s, %s, %s op_sel_hi:[1,0]", a, a, vr(d + 12 * h + 8, 2))
                o = T + 12 + 0 if i == 0 else AO - 8
                o2 = o + 4
                for h in range(2):
                    for q in range(2):
                        e("v_cvt_pk_bf16_f32 v%d, v%d, v%d", o + 2 * h + q, d + 12 * h + 2 * q, d + 12 * h + 2 * q + 1)
                        e("v_cvt_pk_bf16_f32 v%d, v%d, v%d", o2 + 2 * h + q, d + 12 * h + 4 + 2 * q, d + 12 * h + 5 + 2 * q)
                e("buffer_store_dwordx4 %s, v%d, s[%d:%d], s67 offen sc1", vr(o, 4), T + 8, WS, WS + 3)
                e("s_mov_b64 exec, 0xffff")
                e("buffer_store_dwordx4 %s, v%d, s[%d:%d], s66 offen sc1", vr(o2, 4), T + 8, WS, WS + 3)
                e("s_mov_b64 exec, -1\ns_add_u32 s66, s66, %d\ns_add_u32 s67, s67, %d", RT_STRIDE, RT_STRIDE)

    def phase2(self, r, sRG, sCG, vG, vJ):
        e = self.e
        sN, sAI, sBI, sDA, sDB = 77, 75, 76, 78, 79
        rw = r.rt // 2
        FR, ACC = 32, 128
        per = 4 * rw + 8
        e("v_lshrrev_b32 v152, 4, v0\nv_and_b32 v153, 15, v0")
        vG, vJ = 152, 153
        e("s_mul_i32 s64, s%d, %d\nv_lshl_add_u32 v2, v0, 4, s64", sRG, rw * 1024)
        e("v_lshrrev_b32 v1, 2, v0\nv_lshrrev_b32 v3, 3, v0\nv_and_b32 v3, 3, v3\ns_lshl_b32 s64, s%d, 1\nv_xor_b32 v3, s64, v3", sCG)
        e("v_lshlrev_b32 v3, 5, v3\nv_lshl_add_u32 v3, v1, 7, v3\nv_and_b32 v1, 3, v0\nv_lshl_add_u32 v3, v1, 3, v3")
        e("v_add_u32 v3, %d, v3\nv_xor_b32 v4, 32, v3", r.bbase + r.bidx(0) * 16384)
        e("v_bfe_u32 v1, v%d, 1, 2\nv_xor_b32 v1, s64, v1\nv_lshlrev_b32 v1, 5, v1\nv_lshl_add_u32 v1, v%d, 7, v1\nv_lshl_add_u32 v1, v%d, 3, v1", vJ, vJ, vG)
        e("s_mul_i32 s64, s%d, %d\ns_add_u32 s64, s64, %d\nv_add_u32 v5, s64, v1\nv_xor_b32 v6, 32, v5", sRG, rw * 2048, r.xo)
        self.swz128(7, 1, 1280)
        for k in range(rw * 8):
            e("v_mov_b32 v%d, 0", ACC + k)
        e("s_mov_b32 s%d, 0\ns_mov_b32 s%d, 0\ns_mov_b32 s%d, 0", sN, sAI, sBI)

        def reads(s):
            f = FR + per * s
            out = ["ds_read_b128 %s, v2 offset:%d" % (vr(f + 4 * k, 4), (s * r.rt + k) * 1024) for k in range(rw)]
            for u in range(2):
                for rd in range(2):
                    out.append("ds_read_b64_tr_b16 %s, v%d offset:%d" % (vr(f + 4 * rw + 4 * u + 2 * rd, 2), 3 + u, s * 4096 + rd * 2048))
            return out

        def mfmas(s):
            f = FR + per * s
            out = []
            for k in range(rw):
                for u in range(2):
                    d = vr(ACC + 8 * k + 4 * u, 4)
                    out.append("v_mfma_f32_16x16x32_bf16 %s, %s, %s, %s" % (d, vr(f + 4 * rw + 4 * u, 4), vr(f + 4 * k, 4), d))
            return out

        nr = rw + 4
        loop, back = "L_p2_" + r.name, "L_p2b_" + r.name
        e.label(loop)
        e("s_barrier")
        for l in reads(0) + reads(1):
            e(l)
        e("s_mov_b32 s%d, %d\ns_add_u32 s%d, s%d, 1\ns_cmp_eq_u32 s%d, 3\ns_cselect_b32 s%d, %d, s%d\ns_cselect_b32 s%d, 0, s%d",
          sDA, r.aslot, sAI, sAI, sAI, sDA, -2 * r.aslot & 0xffffffff, sDA, sAI, sAI)
        step = 16384 if r is F else -16384
        e("s_mov_b32 s%d, %d\ns_add_u32 s%d, s%d, 1\ns_cmp_eq_u32 s%d, %d\ns_cselect_b32 s%d, %d, s%d\ns_cselect_b32 s%d, 0, s%d",
          sDB, step & 0xffffffff, sBI, sBI, sBI, r.nb, sDB, -(r.nb - 1) * step & 0xffffffff, sDB, sBI, sBI)
        e("s_waitcnt lgkmcnt(%d)", nr)
        for l in interleave(mfmas(0), reads(2)):
            e(l)
        e("s_waitcnt lgkmcnt(%d)", nr)
        for l in interleave(mfmas(1), reads(3)):
            e(l)
        e("s_waitcnt lgkmcnt(%d)", nr)
        for l in interleave(mfmas(2), ["v_add_u32 v2, s%d, v2" % sDA, "v_add_u32 v3, s%d, v3" % sDB, "v_add_u32 v4, s%d, v4" % sDB]):
            e(l)
        e("s_waitcnt lgkmcnt(0)")
        for l in mfmas(3):
            e(l)
        if r is Q:
            e("s_cmp_eq_u32 s%d, %d\ns_cbranch_scc1 L_ostage\ns_cmp_eq_u32 s%d, %d\ns_cbranch_scc1 L_oflag", sN, O_STAGE, sN, O_FLAG - 1)
        e.label(back)
        e("s_add_u32 s%d, s%d, 1\ns_cmp_lg_u32 s%d, 17\ns_cbranch_scc1 %s", sN, sN, sN, loop)
        self.stamp(12)
        for k in range(rw):
            for u in range(2):
                e("ds_read_b64 %s, v%d offset:%d", vr(FR + 4 * k + 2 * u, 2), 5 + u, k * 2048)
        e("s_waitcnt lgkmcnt(0)")
        for k in range(rw):
            for u in range(2):
                x, a, t = FR + 4 * k + 2 * u, ACC + 8 * k + 4 * u, 64
                e("v_lshlrev_b32 v%d, 16, v%d\nv_and_b32 v%d, 0xffff0000, v%d\nv_lshlrev_b32 v%d, 16, v%d\nv_and_b32 v%d, 0xffff0000, v%d",
                  t, x, t + 1, x, t + 2, x + 1, t + 3, x + 1)
                e("v_pk_add_f32 %s, %s, %s\nv_pk_add_f32 %s, %s, %s", vr(a, 2), vr(a, 2), vr(t, 2), vr(a + 2, 2), vr(a + 2, 2), vr(t + 2, 2))
                e("v_cvt_pk_bf16_f32 v%d, v%d, v%d\nv_cvt_pk_bf16_f32 v%d, v%d, v%d", x, a, a + 1, x + 1, a + 2, a + 3)
                e("ds_write_b64 v%d, %s offset:%d", 5 + u, vr(x, 2), k * 2048)
        e("s_waitcnt lgkmcnt(0)")
        e.label("L_final_" + r.name)
        e("s_barrier")
        e("s_lshl_b32 s64, s%d, 10\ns_add_u32 s64, s64, %d\nv_lshl_add_u32 v1, v0, 4, s64\nds_read_b128 v[8:11], v1", sWAVE, r.xo)
        if r is F:
            e("ds_read_b128 v[12:15], v1 offset:8192")
        e("s_mul_i32 s66, s%d, 20480\ns_lshl_b32 s65, s%d, 7\ns_add_u32 s66, s66, s65\ns_mul_i32 s65, s%d, 10240\ns_add_u32 s66, s66, s65",
          sRT0, sCBG, sWAVE)
        e("s_waitcnt lgkmcnt(0)")
        e("buffer_store_dwordx4 v[8:11], v7, s[%d:%d], s66 offen", OUT, OUT + 3)
        if r is F:
            e("s_cmp_ge_u32 s%d, 4\ns_cbranch_scc1 L_done_F\ns_add_u32 s66, s66, 81920", sWAVE)
            e("buffer_store_dwordx4 v[12:15], v7, s[%d:%d], s66 offen", OUT, OUT + 3)
            e.label("L_done_F")
        self.stamp(13)
        self.stamp_flush()
        e("s_endpgm")
        if r is Q:
            e.label("L_ostage")
            self.stamp(8)
            self.ostage(sRG, sCG)
            self.stamp(9)
            e("s_branch " + back)
            e.label("L_oflag")
            e("s_waitcnt vmcnt(0)")
            self.stamp(10)
            e("s_branch " + back)

    def build(self):
        e = self.e
        self.entry()
        e("s_cmp_lt_u32 s%d, 4\ns_cbranch_scc1 L_compute_F", sWAVE)
        self.loader(F)
        self.compute(F)
        e.label("L_role_Q")
        e("s_cmp_lt_u32 s%d, 4\ns_cbranch_scc1 L_compute_Q", sWAVE)
        self.loader(Q)
        self.compute(Q)
        e.label("L_end")
        e("s_endpgm")
        body = fix_hazards(e.L)
        head = open("parallel_sum__linear_attn_block__dense_activation_silu__prompt.s.ref").read()
        head = head.split("; Override launch geometry")[0]
        out = [head.rstrip(),
               "; One persistent launch: 256 workgroups of 8 waves (4 matrix waves, 4 loader waves).",
               "; @launch grid=(256,1,1) block=(512,1,1) lds=163840",
               '.amdgcn_target "amdgcn-amd-amdhsa--gfx950"', ".text", ".globl " + KNAME, ".p2align 8",
               ".type %s,@function" % KNAME, KNAME + ":"]
        out += [l if l.endswith(":") else "    " + l for l in body]
        out += ['.section .rodata,"a"', ".p2align 6", ".amdhsa_kernel " + KNAME,
                "  .amdhsa_next_free_vgpr 256", "  .amdhsa_next_free_sgpr 102", "  .amdhsa_accum_offset 256",
                "  .amdhsa_group_segment_fixed_size 0", "  .amdhsa_kernarg_size 72", "  .amdhsa_user_sgpr_count 2",
                "  .amdhsa_user_sgpr_kernarg_segment_ptr 1", "  .amdhsa_system_sgpr_workgroup_id_x 1", ".end_amdhsa_kernel"]
        return "\n".join(out) + "\n"


if __name__ == "__main__":
    path = sys.argv[1]
    open(path, "w").write(Gen(stamps="--stamps" in sys.argv).build())
```

```python
import sys
from asmlib import Asm, VmTrack, fix_hazards, interleave, f2u, vr, sr

KNAME = "parallel_sum__linear_attn_block__dense_activation_silu__prompt_kernel"

RT_STRIDE = 68 * 1024
WS_STATS = 0x880000
WS_CSUM = 0x888000
CSUM_Q = 13824
WS_KVP = 0x896000
KVP_RB = 3456
WS_FLAGS = 0x902000
WS_STAMP = 0xA00000
WS_SIZE = 0xB00000
OOB = 0x40000000
SPIN_MAX = 1 << 16
KV_CHECK, O_STAGE, O_FLAG = 2, 4, 6

X, W1, W2, WO, WS, OUT, DBG, TMPD = 8, 12, 16, 20, 24, 28, 32, 4
PX, PQKV, PWO, PW1, PW2, POUT, PDBG, PWS = 36, 38, 40, 44, 46, 48, 50, 52
sWAVE, sRB, sGRP, sC16, sP, sB_, sCBG, sRT0, sKT = 54, 55, 56, 57, 58, 59, 60, 61, 62
sW, sI, sT0, sT1, sT2, sT3 = 63, 3, 64, 65, 66, 67
sSTAMP = 84
LOG2E = 1.4426950408889634


class Role:
    pass


F = Role()
F.name, F.slot, F.scr, F.nct = "F", 40960, 151552, 6
F.rt, F.aslot, F.xo, F.bbase, F.nb = 6, 24576, 73728, 86016, 4
F.bidx = lambda n: n % 4
Q = Role()
Q.name, Q.slot, Q.scr, Q.nct = "Q", 49152, 147456, 8
Q.rt, Q.aslot, Q.xo, Q.bbase, Q.nb = 4, 16384, 49152, 65536, 5
Q.bidx = lambda n: 4 - n % 5
Q.scat, Q.kvsum = 49152, 57344
for r_ in (F, Q):
    r_.svc, r_.svc2, r_.st, r_.cs = r_.scr, r_.scr + 4096, r_.scr + 4608, r_.scr + 6656


def slot_of(t):
    return (9 - t) % 3


class Gen:
    def __init__(self, stamps=False, dbgwg=None):
        self.e = Asm()
        self.dbgwg = dbgwg
        self.stamps = stamps

    def srd(self, d, p, size):
        self.e("s_mov_b32 s%d, s%d\ns_mov_b32 s%d, s%d\ns_mov_b32 s%d, 0x%x\ns_mov_b32 s%d, 0x20000",
               d, p, d + 1, p + 1, d + 2, size, d + 3)

    def stamp(self, k):
        if self.stamps:
            self.e(("s_memtime" if self.stamps == "cyc" else "s_memrealtime") + " s[68:69]\ns_waitcnt lgkmcnt(0)\ns_mov_b32 s%d, s68", sSTAMP + k)

    def stamp_flush(self):
        if not self.stamps:
            return
        e = self.e
        e("s_lshl_b32 s64, s2, 3\ns_add_u32 s64, s64, s%d\ns_lshl_b32 s64, s64, 6\ns_add_u32 s64, s64, 0x%x", sWAVE, WS_STAMP)
        e("v_mov_b32 v1, 0")
        for k in range(16):
            e("v_writelane_b32 v1, s%d, %d", sSTAMP + k, k)
        e("v_lshlrev_b32 v2, 2, v0\ns_mov_b64 exec, 0xffff")
        e("buffer_store_dword v1, v2, s[%d:%d], s64 offen", WS, WS + 3)
        if self.dbgwg is not None:
            skip = e.newlabel("nodbg")
            e("s_cmp_lg_u32 s2, %d\ns_cbranch_scc1 %s\ns_cmp_lg_u32 s%d, 4\ns_cbranch_scc1 %s", self.dbgwg, skip, sWAVE, skip)
            e("v_subrev_u32 v1, s%d, v1\ns_mov_b64 exec, 0xfff0", sSTAMP)
            e("buffer_store_dword v1, v2, s[%d:%d], 0 offen", DBG, DBG + 3)
            e.label(skip)
        e("s_mov_b64 exec, -1")

    def swz128(self, dst, tmp, stride):
        e = self.e
        e("v_lshrrev_b32 v%d, 4, v0\nv_lshlrev_b32 v%d, 1, v%d\nv_xor_b32 v%d, v%d, v0\nv_and_b32 v%d, 7, v%d",
          tmp, tmp, tmp, tmp, tmp, tmp, tmp)
        e("v_lshlrev_b32 v%d, 4, v%d\nv_lshrrev_b32 v%d, 3, v0\nv_mul_u32_u24 v%d, %d, v%d\nv_add_u32 v%d, v%d, v%d",
          tmp, tmp, dst, dst, stride, dst, dst, dst, tmp)

    def spin(self, vm, vdst, vaddr, srd, want, first_issued):
        e = self.e
        ok, again = e.newlabel("ok"), e.newlabel("spin")
        if first_issued:
            vm.wait(first_issued)
        e("s_cmp_lg_u32 s%d, 0\ns_cbranch_scc1 %s", sW, ok)
        if first_issued:
            e("v_cmp_le_u32 vcc, %d, v%d\ns_cmp_eq_u64 vcc, -1\ns_cbranch_scc1 %s", want, vdst, ok)
        e("s_mov_b32 s%d, %d", sT3, SPIN_MAX)
        e.label(again)
        e("buffer_load_dword v%d, v%d, s[%d:%d], 0 offen sc1", vdst, vaddr, srd, srd + 3)
        e("s_waitcnt vmcnt(0)")
        e("v_cmp_le_u32 vcc, %d, v%d\ns_cmp_eq_u64 vcc, -1\ns_cbranch_scc1 %s", want, vdst, ok)
        e("s_sleep 4\ns_sub_u32 s%d, s%d, 1\ns_cmp_lg_u32 s%d, 0\ns_cbranch_scc1 %s", sT3, sT3, sT3, again)
        e.label(ok)

    def set_flag(self, vm, vaddr, word, vtmp):
        self.e("v_mov_b32 v%d, 1", vtmp)
        vm.issue("flag", "buffer_store_dword v%d, v%d, s[%d:%d], 0 offen offset:%d sc1", vtmp, vaddr, WS, WS + 3, 4 * word)

    def entry(self):
        e = self.e
        e("s_cmp_ge_u32 s2, 256\ns_cbranch_scc1 L_end")
        e("s_load_dwordx16 s[36:51], s[0:1], 0\ns_load_dwordx2 s[52:53], s[0:1], 64")
        e("v_lshrrev_b32 v1, 6, v0\nv_and_b32 v0, 63, v0\nv_readfirstlane_b32 s%d, v1", sWAVE)
        e("s_lshr_b32 s%d, s2, 3", sI)
        e("s_bfe_u32 s%d, s2, 0x20001\ns_and_b32 s%d, s2, 1", sP, sB_)
        e("s_and_b32 s64, s%d, 3\ns_lshl_b32 s%d, s%d, 2\ns_add_u32 s%d, s%d, s64", sI, sRB, sP, sRB, sRB)
        e("s_lshr_b32 s65, s%d, 2\ns_lshl_b32 s%d, s%d, 3\ns_add_u32 s%d, s%d, s65", sI, sC16, sB_, sC16, sC16)
        e("s_lshr_b32 s66, s%d, 3\ns_lshl_b32 s%d, s%d, 2\ns_add_u32 s%d, s%d, s66", sI, sGRP, sB_, sGRP, sGRP)
        e("s_mul_i32 s67, s64, 3\ns_add_u32 s%d, s%d, s67\ns_add_u32 s%d, s%d, s%d", sKT, sC16, sKT, sKT, sP)
        for _ in range(2):
            e("s_sub_u32 s67, s%d, 10\ns_cmp_ge_u32 s%d, 10\ns_cselect_b32 s%d, s67, s%d", sKT, sKT, sKT, sKT)
        e("s_and_b32 s%d, s%d, 3", sW, sWAVE)
        e("s_lshl_b32 s66, s66, 2\ns_add_u32 s70, s66, s64")
        self.stamp(0)
        e("s_bitcmp1_b32 s%d, 2\ns_cbranch_scc1 L_role_Q", sI)

    def phase2_ids(self, r):
        e = self.e
        if r is F:
            e("s_lshr_b32 s64, s70, 2\ns_and_b32 s65, s70, 3")
            e("s_sub_u32 s66, s70, 12\ns_lshr_b32 s67, s66, 1\ns_add_u32 s67, s67, 3\ns_and_b32 s66, s66, 1")
            e("s_cmp_ge_u32 s70, 12\ns_cselect_b32 s64, s67, s64\ns_cselect_b32 s65, s66, s65\ns_mul_i32 s65, s65, 6")
        else:
            e("s_lshr_b32 s64, s70, 1\ns_and_b32 s65, s70, 1\ns_add_u32 s65, s65, 6")
            e("s_sub_u32 s66, s70, 3\ns_sub_u32 s67, s70, 8\ns_cmp_ge_u32 s70, 11\ns_cselect_b32 s66, s67, s66\ns_cselect_b32 s67, 4, 3")
            e("s_cmp_ge_u32 s70, 6\ns_cselect_b32 s64, s67, s64\ns_cselect_b32 s65, s66, s65\ns_lshl_b32 s65, s65, 2")
        e("s_mul_i32 s%d, s%d, 5\ns_add_u32 s%d, s%d, s64", sCBG, sB_, sCBG, sCBG)
        e("s_lshl_b32 s%d, s%d, 5\ns_add_u32 s%d, s%d, s65", sRT0, sP, sRT0, sRT0)
        e("s_mul_i32 s66, s65, 3\ns_lshr_b32 s66, s66, 3\ns_mul_i32 s67, s%d, 5\ns_add_u32 s71, s66, s67", sCBG)
        e("s_mul_i32 s66, s71, 43\ns_lshr_b32 s66, s66, 9\ns_mul_i32 s66, s66, 12\ns_sub_u32 s71, s71, s66")
        e("s_and_b32 s72, s71, 3")

    def loader(self, r):
        e = self.e
        vm = VmTrack(e)
        vA, vB, vB2, vBX, vL16, vT, vU, vPOLL, vHF, vOF, vKF = 2, 3, 4, 5, 6, 7, 8, 9, 10, 11, 12
        vCSA, vL4, vKVA, vMY, vSF, vGF = 13, 14, 15, 28, 29, 30
        sA, sBo, sW1K, sWB = 73, 74, 75, 76
        sTA, sTB, sAT, sBT, sBTo = 77, 78, 79, 80, 81
        EXB = 82
        e.label("L_loader_" + r.name)
        e("s_and_b32 s64, s%d, 1\ns_lshl_b32 s64, s64, 2", sW)
        e("v_lshrrev_b32 v1, 4, v0\nv_add_u32 v1, s64, v1\nv_xor_b32 v1, v1, v0\nv_and_b32 v1, 7, v1\nv_lshlrev_b32 v1, 4, v1")
        e("s_lshl_b32 s65, s%d, 3\nv_lshrrev_b32 v%d, 3, v0\nv_add_u32 v%d, s65, v%d", sW, vT, vT, vT)
        e("v_mul_u32_u24 v%d, 1280, v%d\nv_add_u32 v%d, v%d, v1", vA, vT, vA, vA)
        e("s_lshl_b32 s%d, s%d, 10", sW1K, sW)
        if r is Q:
            e("s_lshl_b32 s64, s%d, 6\nv_add_u32 v1, s64, v0", sW)
            e("v_mul_u32_u24 v%d, 2185, v1\nv_lshrrev_b32 v%d, 16, v%d", vB, vB, vB)
            e("v_mul_u32_u24 v%d, 30, v%d\nv_sub_u32 v1, v1, v%d", vU, vB, vU)
            e("v_mul_u32_u24 v%d, 26, v1\nv_lshrrev_b32 v%d, 8, v%d\nv_mul_u32_u24 v%d, 1120, v%d", vU, vU, vU, vU, vU)
            e("v_mul_u32_u24 v%d, 3840, v%d\nv_lshl_add_u32 v%d, v1, 4, v%d\nv_add_u32 v%d, v%d, v%d", vB, vB, vB, vB, vB, vB, vU)
            e("s_mov_b32 s%d, -1\ns_cmp_eq_u32 s%d, 3\ns_cselect_b32 s%d, 0xffff, -1", EXB, sW, EXB + 1)
            e("s_mov_b32 s%d, s%d", sWB, sW1K)
        else:
            e("s_and_b32 s64, s%d, 1\ns_lshl_b32 s64, s64, 2", sW)
            e("v_bfe_u32 v1, v0, 4, 1\nv_lshlrev_b32 v1, 1, v1\nv_add_u32 v1, s64, v1\nv_xor_b32 v1, v1, v0\nv_and_b32 v1, 7, v1")
            e("v_lshlrev_b32 v1, 4, v1\nv_mul_u32_u24 v%d, 3072, v%d\nv_add_u32 v%d, v%d, v1", vB, vT, vB, vB)
            e("s_mul_i32 s%d, s%d, 3072", sWB, sW)
        e("s_waitcnt lgkmcnt(0)")
        self.srd(X, PX, 2621440)
        if r is Q:
            self.srd(W1, PQKV, 640 * 1920 * 2)
        else:
            self.srd(W1, PW1, 640 * 1536 * 2)

        def tile(t):
            base = slot_of(t) * r.slot
            e("s_mul_i32 s%d, s%d, 163840\ns_lshl_b32 s64, s%d, 7\ns_add_u32 s%d, s%d, s64", sA, sRB, sKT, sA, sA)
            for j in range(4):
                e("s_add_u32 m0, s%d, %d\ns_add_u32 s64, s%d, %d", sW1K, base + 4096 * j, sA, 40960 * j)
                vm.issue("t%d" % t, "buffer_load_dwordx4 v%d, s[%d:%d], s64 offen lds", vA, X, X + 3)
            if r is Q:
                e("s_mul_i32 s%d, s%d, 160\ns_mul_i32 s64, s%d, 245760\ns_add_u32 s%d, s%d, s64", sBo, sGRP, sKT, sBo, sBo)
                e("s_mov_b64 exec, s[%d:%d]", EXB, EXB + 1)
                for c in range(8):
                    e("s_add_u32 m0, s%d, %d\ns_add_u32 s64, s%d, %d", sWB, base + 16384 + c * 4096 + (c & 1) * 128, sBo, c * 30720)
                    vm.issue("t%d" % t, "buffer_load_dwordx4 v%d, s[%d:%d], s64 offen lds", vB, W1, W1 + 3)
                e("s_mov_b64 exec, -1")
            else:
                e("s_mul_i32 s%d, s%d, 384\ns_mul_i32 s64, s%d, 196608\ns_add_u32 s%d, s%d, s64", sBo, sGRP, sKT, sBo, sBo)
                for cc in range(2):
                    for a in range(3):
                        e("s_add_u32 m0, s%d, %d\ns_add_u32 s64, s%d, %d", sWB, base + 16384 + cc * 12288 + a * 1024, sBo, cc * 98304 + 128 * a)
                        vm.issue("t%d" % t, "buffer_load_dwordx4 v%d, s[%d:%d], s64 offen lds", vB, W1, W1 + 3)
            e("s_add_u32 s%d, s%d, 1\ns_cmp_eq_u32 s%d, 10\ns_cselect_b32 s%d, 0, s%d", sKT, sKT, sKT, sKT, sKT)

        for t in range(2):
            tile(t)
        self.stamp(1)
        self.srd(W2, PW2, 1536 * 640 * 2)
        self.srd(WO, PWO, 640 * 640 * 2)
        self.srd(WS, PWS, WS_SIZE)
        self.srd(OUT, POUT, 2621440)
        self.srd(DBG, PDBG, 256)
        self.phase2_ids(r)
        self.swz128(vB2, 1, 1280)
        e("v_lshrrev_b32 v1, 5, v0\nv_mul_u32_u24 v1, %d, v1\nv_add_u32 v%d, v%d, v1", 36 * 1280, vBX, vB2)
        e("v_lshlrev_b32 v%d, 4, v0\nv_lshlrev_b32 v%d, 2, v0", vL16, vL4)
        e("s_mov_b32 s67, 0x%x\ns_cmp_eq_u32 s%d, 0\ns_cselect_b32 s67, 0x%x, s67", OOB, sW, WS_FLAGS)
        e("s_lshr_b32 s64, s%d, 3\ns_add_u32 s65, s%d, %d\ns_lshr_b32 s65, s65, 3\ns_sub_u32 s65, s65, s64", sRT0, sRT0, r.rt - 1)
        e("s_lshl_b32 s64, s64, 10\ns_add_u32 s64, s64, s67\ns_lshl_b32 s65, s65, 10")
        e("v_bfe_u32 v1, v0, 3, 1\nv_mul_u32_u24 v1, s65, v1\nv_and_b32 v%d, 7, v0\nv_lshl_add_u32 v%d, v%d, 7, v1\nv_add_u32 v%d, s64, v%d",
          vHF, vHF, vHF, vHF, vHF)
        e("v_add_u32 v%d, %d, v%d\nv_add_u32 v%d, 4, v%d", vOF, 16384 + 8, vHF, vHF, vHF)
        e("s_lshl_b32 s64, s%d, 10\ns_lshl_b32 s65, s%d, 7\ns_add_u32 s64, s64, s65\ns_add_u32 s64, s64, s67\ns_add_u32 s64, s64, %d",
          sRB, sGRP, 16384 if r is Q else 0)
        e("v_mov_b32 v1, s64\nv_mov_b32 v%d, 0x%x\nv_cmp_eq_u32 vcc, 0, v0\nv_cndmask_b32 v%d, v%d, v1, vcc", vMY, OOB, vMY, vMY)
        e("v_subrev_u32 v1, 16, v0\nv_and_b32 v16, 3, v1\nv_lshrrev_b32 v1, 2, v1\ns_and_b32 s64, s%d, 3", sGRP)
        if r is Q:
            e("v_min_u32 v1, 5, v1\nv_lshrrev_b32 v17, 1, v1\nv_mul_u32_u24 v17, 5, v17\nv_and_b32 v1, 1, v1\nv_add_u32 v1, v1, v17\nv_add_u32 v1, s64, v1")
        else:
            e("v_min_u32 v1, 2, v1\ns_mul_i32 s64, s64, 3\ns_add_u32 s64, s64, 15\nv_add_u32 v1, s64, v1")
        e("v_lshlrev_b32 v16, 5, v16\nv_and_b32 v17, 3, v1\nv_lshl_add_u32 v16, v17, 3, v16\nv_lshrrev_b32 v17, 3, v1\nv_add_u32 v16, v16, v17")
        e("v_bfe_u32 v17, v1, 2, 1\nv_lshl_add_u32 v16, v17, 7, v16\ns_lshl_b32 s64, s%d, 2\nv_add_u32 v16, s64, v16", sB_)
        e("v_bfe_u32 v17, v0, 3, 1\nv_lshlrev_b32 v17, 7, v17\nv_and_b32 v1, 7, v0\nv_add_u32 v17, v17, v1\ns_lshl_b32 s64, s%d, 3\nv_add_u32 v17, s64, v17", sRB)
        e("v_cmp_gt_u32 vcc, 16, v0\nv_cndmask_b32 v16, v16, v17, vcc\nv_lshlrev_b32 v16, 7, v16\nv_add_u32 v%d, s67, v16", vSF)
        e("s_mov_b32 s64, 0x%x\ns_cmp_eq_u32 s%d, 0\ns_cselect_b32 s64, 0, s64\nv_and_b32 v1, 3, v0\nv_lshl_add_u32 v%d, v1, 2, s64", OOB, sW, vGF)
        if r is Q:
            e("s_lshl_b32 s64, s%d, 7\ns_add_u32 s64, s64, s67\ns_add_u32 s64, s64, %d\nv_and_b32 v1, 15, v0\nv_lshl_add_u32 v%d, v1, 10, s64",
              sGRP, 16384 + 4, vKF)
            e("s_lshl_b32 s64, s%d, 6\nv_add_u32 v1, s64, v0\nv_lshlrev_b32 v%d, 4, v1", sW, vKVA)
            e("s_mul_i32 s65, s%d, %d\ns_add_u32 s65, s65, 0x%x\nv_add_u32 v%d, s65, v%d", sGRP, 16 * KVP_RB, WS_KVP, vKVA, vKVA)
            e("v_mov_b32 v%d, 0x%x\nv_cmp_gt_u32 vcc, 210, v1\nv_cndmask_b32 v%d, v%d, v%d, vcc", vT, OOB, vKVA, vT, vKVA)
            e("v_mul_u32_u24 v%d, 205, v1\nv_lshrrev_b32 v%d, 14, v%d\nv_mul_u32_u24 v%d, 560, v%d\nv_add_u32 v%d, v%d, v1",
              vU, vU, vU, vU, vU, vU, vU)
            e("s_mul_i32 s65, s%d, 80\nv_add_u32 v%d, s65, v%d\nv_lshlrev_b32 v%d, 2, v%d\nv_add_u32 v%d, 0x%x, v%d",
              sGRP, vU, vU, vU, vU, vU, WS_CSUM, vU)
            e("v_cmp_gt_u32 vcc, 240, v1\nv_cndmask_b32 v%d, v%d, v%d, vcc", vCSA, vT, vU)
        else:
            e("s_lshl_b32 s64, s%d, 6\nv_add_u32 v1, s64, v0", sW)
            e("s_mul_i32 s65, s%d, 192\ns_add_u32 s65, s65, 1920\nv_add_u32 v%d, s65, v1\nv_lshlrev_b32 v%d, 2, v%d\nv_add_u32 v%d, 0x%x, v%d",
              sGRP, vU, vU, vU, vU, WS_CSUM, vU)
            e("v_mov_b32 v%d, 0x%x\nv_cmp_gt_u32 vcc, 192, v1\nv_cndmask_b32 v%d, v%d, v%d, vcc", vT, OOB, vCSA, vT, vU)

        e("s_mov_b32 s%d, s71\ns_mov_b32 s%d, s71", sTA, sTB)

        def adv(s, n):
            if n < 11:
                e("s_add_u32 s%d, s%d, 1\ns_cmp_eq_u32 s%d, 12\ns_cselect_b32 s%d, 0, s%d", s, s, s, s, s)
            elif n == 11:
                e("s_mov_b32 s%d, s72", s)
            elif n < 15:
                e("s_add_u32 s%d, s%d, 1\ns_and_b32 s%d, s%d, 3", s, s, s, s)

        def btile(n):
            base = r.bbase + r.bidx(n) * 16384
            e("s_lshl_b32 s65, s%d, 12\ns_lshl_b32 s66, s%d, 7", sW, sCBG)
            if n < 12:
                e("s_lshl_b32 s%d, s%d, 2\ns_add_u32 s%d, s%d, s%d\ns_mul_i32 s%d, s%d, 40960\ns_add_u32 s%d, s%d, s66",
                  sBT, sTB, sBT, sBT, sW, sBT, sBT, sBT, sBT)
                rows, srd, va = (0, 8, 16, 24), W2, vB2
            elif n < 16:
                e("s_lshl_b32 s%d, s%d, 2\ns_add_u32 s%d, s%d, s%d\ns_mul_i32 s%d, s%d, 51200\ns_add_u32 s%d, s%d, s66",
                  sBT, sTB, sBT, sBT, sW, sBT, sBT, sBT, sBT)
                rows, srd, va = (0, 8, 20, 28), WO, vB2
            else:
                e("s_mul_i32 s%d, s%d, 204800\ns_add_u32 s%d, s%d, s66", sBT, sW, sBT, sBT)
                rows, srd, va = (16, 96, 36, 116), WO, vBX
            for q in range(4):
                e("s_add_u32 m0, s65, %d\ns_add_u32 s64, s%d, %d", base + q * 1024, sBT, rows[q] * 1280)
                vm.issue("B%d" % n, "buffer_load_dwordx4 v%d, s[%d:%d], s64 offen lds", va, srd, srd + 3)
            adv(sTB, n)

        def atile(n):
            base = (n % 3) * r.aslot
            e("s_mul_i32 s65, s%d, %d\ns_mul_i32 s66, s%d, %d", sW, r.rt * 1024, sRT0, RT_STRIDE)
            if n < 16:
                e("s_lshl_b32 s%d, s%d, 2\ns_add_u32 s%d, s%d, s%d", sAT, sTA, sAT, sAT, sW)
                if n >= 12:
                    e("s_add_u32 s%d, s%d, 48", sAT, sAT)
            else:
                e("s_add_u32 s%d, s%d, 64", sAT, sW)
            e("s_lshl_b32 s%d, s%d, 10\ns_add_u32 s%d, s%d, s66", sAT, sAT, sAT, sAT)
            for k in range(r.rt):
                e("s_add_u32 m0, s65, %d\ns_add_u32 s64, s%d, %d", base + k * 1024, sAT, k * RT_STRIDE)
                vm.issue("A%d" % n, "buffer_load_dwordx4 v%d, s[%d:%d], s64 offen sc1 lds", vL16, WS, WS + 3)
            adv(sTA, n)

        def xotile():
            e("s_mul_i32 s66, s%d, 20480\ns_lshl_b32 s65, s%d, 7\ns_add_u32 s66, s66, s65\ns_mul_i32 s65, s%d, 10240\ns_add_u32 s66, s66, s65",
              sRT0, sCBG, sW)
            for j in range(r.rt // 2):
                e("s_add_u32 m0, s%d, %d\ns_add_u32 s64, s66, %d", sW1K, r.xo + j * 4096, j * 40960)
                vm.issue("XO", "buffer_load_dwordx4 v%d, s[%d:%d], s64 offen lds", vB2, X, X + 3)

        vm.wait("t0")
        e("s_barrier")
        self.stamp(2)
        tile(2)
        l1, l3, lj = (e.newlabel("svc") for _ in range(3))
        e("v_mov_b32 v%d, 0x%x\nv_mov_b32 v%d, 0", vT, OOB, vU)
        e("s_cmp_eq_u32 s%d, 1\ns_cbranch_scc1 %s\ns_cmp_ge_u32 s%d, 2\ns_cbranch_scc1 %s", sW, l1, sW, lj)
        e("v_add_u32 v1, %d, v%d", r.svc, vL4)
        for g in range(16):
            e("ds_read_b32 v%d, v1 offset:%d", 32 + g, g * 256)
        e("s_cmp_ge_u32 s%d, 27\ns_cbranch_scc1 %s", sI, l3)
        e("s_mul_i32 s64, s%d, 52\ns_lshr_b32 s64, s64, 8\ns_mul_i32 s64, s64, 320\ns_lshl_b32 s65, s%d, 6\ns_add_u32 s64, s64, s65", sI, sI)
        e("s_mul_i32 s65, s%d, 320\ns_add_u32 s64, s64, s65", sB_)
        e("s_mul_i32 s65, s%d, 768\ns_lshl_b32 s66, s%d, 6\ns_add_u32 s65, s65, s66\ns_add_u32 s65, s65, 960", sB_, sI)
        e("s_cmp_ge_u32 s%d, 15\ns_cselect_b32 s64, s65, s64\ns_lshl_b32 s64, s64, 2", sI)
        e("s_mul_i32 s65, s%d, %d\ns_add_u32 s64, s64, s65\ns_add_u32 s64, s64, 0x%x\nv_add_u32 v%d, s64, v%d", sP, CSUM_Q, WS_CSUM, vT, vL4)
        e.label(l3)
        e("s_waitcnt lgkmcnt(0)")
        for st in (8, 4, 2, 1):
            for g in range(st):
                e("v_add_f32 v%d, v%d, v%d", 32 + g, 32 + g, 32 + g + st)
        e("v_mov_b32 v%d, v32\ns_branch %s", vU, lj)
        e.label(l1)
        e("v_add_u32 v1, %d, v%d\nds_read_b32 v%d, v1", r.svc2, vL4, vU)
        e("s_lshl_b32 s64, s%d, 4\ns_add_u32 s64, s64, s%d\ns_lshl_b32 s64, s64, 7\ns_add_u32 s64, s64, 0x%x", sRB, sC16, WS_STATS)
        e("v_add_u32 v1, s64, v%d\nv_cmp_gt_u32 vcc, 32, v0\nv_cndmask_b32 v%d, v%d, v1, vcc\ns_waitcnt lgkmcnt(0)", vL4, vT, vT)
        e.label(lj)
        vm.issue("svc", "buffer_store_dword v%d, v%d, s[%d:%d], 0 offen sc1", vU, vT, WS, WS + 3)

        for t in range(10):
            n = t + 1
            if n <= 9:
                vm.wait("t%d" % n)
            if n == 3:
                vm.wait("svc")
                self.spin(vm, vPOLL, vGF, DBG, 1, "pg")
            if n == 7:
                self.spin(vm, vPOLL, vSF, WS, 1, "ps")
            if n == 9:
                vm.wait("cs")
                e("v_add_f32 v32, v32, v33\nv_add_f32 v34, v34, v35\nv_add_f32 v32, v32, v34")
                e("s_lshl_b32 s64, s%d, 8\ns_add_u32 s64, s64, %d\nv_add_u32 v1, s64, v%d\nds_write_b32 v1, v32\ns_waitcnt lgkmcnt(0)", sW, r.cs, vL4)
            e("s_barrier")
            if n in (1, 4, 7):
                self.stamp({1: 6, 4: 14, 7: 15}[n])
            if n == 1:
                vm.issue("pg", "buffer_load_dword v%d, v%d, s[%d:%d], 0 offen sc1", vPOLL, vGF, DBG, DBG + 3)
            if n == 3:
                self.set_flag(vm, vMY, 0, vU)
            if n == 5:
                vm.issue("ps", "buffer_load_dword v%d, v%d, s[%d:%d], 0 offen sc1", vPOLL, vSF, WS, WS + 3)
            if n + 2 <= 9:
                tile(n + 2)
            if n == 7:
                e("s_lshl_b32 s64, s%d, 11\ns_lshl_b32 s65, s%d, 9\ns_add_u32 s64, s64, s65\ns_add_u32 s64, s64, 0x%x", sRB, sW, WS_STATS)
                e("s_add_u32 m0, s65, %d\ns_mov_b32 exec_hi, 0", r.st)
                vm.issue("cs", "buffer_load_dwordx4 v%d, s[%d:%d], s64 offen sc1 lds", vL16, WS, WS + 3)
                e("s_mov_b64 exec, -1")
                for q in range(4):
                    e("s_mov_b32 s64, %d", q * CSUM_Q)
                    vm.issue("cs", "buffer_load_dword v%d, v%d, s[%d:%d], s64 offen sc1", 32 + q, vCSA, WS, WS + 3)
            if n == 8:
                for j in range(4 if r is F else 3):
                    btile(j)
            if n == 9 and r is Q:
                btile(3)
                btile(4)
        self.stamp(3)
        if r is F:
            xotile()
            e("s_barrier")
            self.set_flag(vm, vMY, 1, vU)
            self.spin(vm, vPOLL, vHF, WS, 1, None)
            self.stamp(4)
            e("s_barrier")
        else:
            self.spin(vm, vPOLL, vHF, WS, 1, None)
            self.stamp(4)
            e("s_barrier")
            self.stamp(5)
            e("s_lshl_b32 s64, s%d, 11\ns_add_u32 s64, s64, %d\nv_lshl_add_u32 v1, v0, 5, s64", sW, Q.scat)
            e("ds_read_b128 v[32:35], v1\nds_read_b128 v[36:39], v1 offset:16\nds_read_b128 v[40:43], v1 offset:6720\nds_read_b128 v[44:47], v1 offset:6736")
            e("s_mul_i32 s64, s%d, %d\ns_waitcnt lgkmcnt(0)", sRB, KVP_RB)
            for j in range(4):
                e("v_pk_add_f32 v[%d:%d], v[%d:%d], v[%d:%d]", 32 + 2 * j, 33 + 2 * j, 32 + 2 * j, 33 + 2 * j, 40 + 2 * j, 41 + 2 * j)
            for j in range(4):
                e("v_cvt_pk_bf16_f32 v%d, v%d, v%d", 48 + j, 32 + 2 * j, 33 + 2 * j)
            vm.issue("kvp", "buffer_store_dwordx4 v[48:51], v%d, s[%d:%d], s64 offen sc1", vKVA, WS, WS + 3)
        for n in range(3):
            atile(n)

        for n in range(17):
            if r is Q and n == KV_CHECK:
                self.spin(vm, vPOLL, vKF, WS, 1, "pk")
            if r is Q and n == O_STAGE:
                vm.wait("kvl")
                e("s_mov_b32 s64, 0x3f80\ns_mov_b32 s65, 0x3f800000")
                for j in range(8):
                    e("v_mov_b32 v%d, 0", 16 + j)
                for rb in range(16):
                    for j in range(4):
                        e("v_dot2c_f32_bf16 v%d, s64, v%d\nv_dot2c_f32_bf16 v%d, s65, v%d", 16 + 2 * j, 32 + 4 * rb + j, 17 + 2 * j, 32 + 4 * rb + j)
                for j in range(4):
                    e("v_cvt_pk_bf16_f32 v%d, v%d, v%d", 24 + j, 16 + 2 * j, 17 + 2 * j)
                e("s_lshl_b32 s64, s%d, 10\ns_add_u32 s64, s64, %d\nv_add_u32 v1, s64, v%d", sW, Q.kvsum, vL16)
                e("s_cmp_eq_u32 s%d, 3\ns_cselect_b32 exec_lo, 0x3ffff, -1\ns_cselect_b32 exec_hi, 0, -1", sW)
                e("ds_write_b128 v1, v[24:27]\ns_mov_b64 exec, -1\ns_waitcnt lgkmcnt(0)")
            if n == 10:
                self.spin(vm, vPOLL, vOF, WS, 1, "po")
                self.stamp(10)
            vm.wait("A%d" % n)
            if n == 16:
                vm.wait_all()
            e("s_barrier")
            if n in (0, 3, 9, 12, 16):
                self.stamp({0: 7, 3: 8, 9: 9, 12: 11, 16: 12}[n])
            if r is Q and n == 0:
                self.set_flag(vm, vMY, 1, vU)
                xotile()
            if r is Q and n == KV_CHECK - 1:
                vm.issue("pk", "buffer_load_dword v%d, v%d, s[%d:%d], 0 offen sc1", vPOLL, vKF, WS, WS + 3)
            if r is Q and n == KV_CHECK:
                for rb in range(16):
                    e("s_mov_b32 s64, %d", rb * KVP_RB)
                    vm.issue("kvl", "buffer_load_dwordx4 v[%d:%d], v%d, s[%d:%d], s64 offen sc1", 32 + 4 * rb, 35 + 4 * rb, vKVA, WS, WS + 3)
            if r is Q and n == O_FLAG:
                self.set_flag(vm, vMY, 2, vU)
            if n == 9:
                vm.issue("po", "buffer_load_dword v%d, v%d, s[%d:%d], 0 offen sc1", vPOLL, vOF, WS, WS + 3)
            nb = n - 1 + r.nb
            if n >= 1:
                if n + 2 <= 16:
                    atile(n + 2)
                if nb <= 16:
                    btile(nb)
        e("v_mov_b32 v7, v%d", vB2)
        e("s_branch L_final_" + r.name)

    def service(self, r):
        e = self.e
        e("s_lshl_b32 s64, s%d, 4\ns_add_u32 s64, s64, s%d\ns_lshl_b32 s64, s64, 2\ns_add_u32 s64, s64, s%d\ns_lshl_b32 s64, s64, 1", sRB, sC16, sW)
        e("v_lshrrev_b32 v1, 5, v0\nv_add_u32 v1, s64, v1\nv_mul_u32_u24 v1, 1280, v1\nv_and_b32 v2, 31, v0\nv_lshl_add_u32 v1, v2, 4, v1")
        e("v_mov_b32 v3, 0x%x\nv_cmp_gt_u32 vcc, 16, v2\nv_cndmask_b32 v3, v3, v1, vcc", OOB)
        e("s_mul_i32 s64, s%d, 52\ns_lshr_b32 s64, s64, 8\ns_mul_i32 s64, s64, 320\ns_lshl_b32 s65, s%d, 6\ns_add_u32 s64, s64, s65", sI, sI)
        e("s_mul_i32 s65, s%d, 320\ns_add_u32 s64, s64, s65", sB_)
        e("s_mul_i32 s65, s%d, 768\ns_lshl_b32 s66, s%d, 6\ns_add_u32 s65, s65, s66\ns_sub_u32 s65, s65, 960", sB_, sI)
        e("s_cmp_ge_u32 s%d, 15\ns_cselect_b32 s64, s65, s64\ns_movk_i32 s65, 3840\ns_cselect_b32 s65, 3072, s65\ns_lshl_b32 s64, s64, 1", sI)
        e("s_mul_i32 s66, s%d, 160\ns_lshl_b32 s67, s%d, 3\ns_add_u32 s66, s66, s67", sP, sW)
        e("v_lshrrev_b32 v4, 3, v0\nv_add_u32 v4, s66, v4\nv_mul_lo_u32 v4, v4, s65\nv_and_b32 v5, 7, v0\nv_lshl_add_u32 v4, v5, 4, v4\nv_add_u32 v4, s64, v4")
        e("s_lshl_b32 s65, s65, 5")
        e("s_waitcnt lgkmcnt(0)")
        self.srd(X, PX, 2621440)
        e("s_cmp_ge_u32 s%d, 15\ns_cselect_b32 s%d, s%d, s%d\ns_cselect_b32 s%d, s%d, s%d", sI, TMPD, PW1, PQKV, TMPD + 1, PW1 + 1, PQKV + 1)
        e("s_mov_b32 s66, %d\ns_cselect_b32 s%d, %d, s66\ns_mov_b32 s%d, 0x20000", 640 * 1920 * 2, TMPD + 2, 640 * 1536 * 2, TMPD + 3)
        e("s_cmp_ge_u32 s%d, 27\ns_cselect_b32 s%d, 0, s%d", sI, TMPD + 2, TMPD + 2)
        e("buffer_load_dwordx4 v[32:35], v1, s[%d:%d], 0 offen", X, X + 3)
        e("buffer_load_dwordx4 v[36:39], v1, s[%d:%d], 0 offen offset:512", X, X + 3)
        e("buffer_load_dwordx4 v[40:43], v3, s[%d:%d], 0 offen offset:1024", X, X + 3)
        e("s_mov_b32 s66, 0")
        for j in range(5):
            e("buffer_load_dwordx4 v[%d:%d], v4, s[%d:%d], s66 offen", 44 + 4 * j, 47 + 4 * j, TMPD, TMPD + 3)
            if j < 4:
                e("s_add_u32 s66, s66, s65")

    def service_finish(self, r):
        e = self.e
        e("s_mov_b32 s64, 0x3f803f80\ns_mov_b32 s65, 0x3f80\ns_mov_b32 s66, 0x3f800000")
        for k in range(10):
            e("v_mov_b32 v%d, 0", 64 + k)
        e("s_waitcnt vmcnt(5)")
        for k in range(12):
            e("v_dot2c_f32_bf16 v72, s64, v%d\nv_dot2c_f32_bf16 v73, v%d, v%d", 32 + k, 32 + k, 32 + k)
        for ror in (8, 4, 2, 1):
            e("v_add_f32_dpp v72, v72, v72 row_ror:%d row_mask:0xf bank_mask:0xf", ror)
            e("v_add_f32_dpp v73, v73, v73 row_ror:%d row_mask:0xf bank_mask:0xf", ror)
        e("ds_swizzle_b32 v74, v72 offset:0x401F\nds_swizzle_b32 v75, v73 offset:0x401F")
        e("s_waitcnt vmcnt(0)")
        for j in range(5):
            for k in range(4):
                e("v_dot2c_f32_bf16 v%d, s65, v%d\nv_dot2c_f32_bf16 v%d, s66, v%d", 64 + 2 * k, 44 + 4 * j + k, 65 + 2 * k, 44 + 4 * j + k)
        e("s_waitcnt lgkmcnt(0)")
        e("v_add_f32 v72, v72, v74\nv_add_f32 v73, v73, v75")
        e("v_mul_f32 v72, 0x%x, v72\nv_mul_f32 v73, 0x%x, v73\nv_fma_f32 v73, -v72, v72, v73\nv_max_f32 v73, 0, v73\nv_add_f32 v73, 0x%x, v73",
          f2u(1.0 / 640), f2u(1.0 / 640), f2u(1e-5))
        e("v_rsq_f32 v74, v73\nv_sqrt_f32 v75, v73")
        for k in range(8):
            e("v_add_f32_dpp v%d, v%d, v%d row_ror:8 row_mask:0xf bank_mask:0xf", 64 + k, 64 + k, 64 + k)
        e("s_lshl_b32 s64, s%d, 3\ns_add_u32 s64, s64, %d\nv_lshrrev_b32 v1, 5, v0\nv_lshl_add_u32 v1, v1, 2, s64", sW, r.svc2)
        e("ds_write_b32 v1, v72\nds_write_b32 v1, v74 offset:32\nds_write_b32 v1, v75 offset:64")
        e("s_lshl_b32 s64, s%d, 10\ns_add_u32 s64, s64, %d\nv_lshrrev_b32 v1, 4, v0\nv_lshl_add_u32 v1, v1, 8, s64", sW, r.svc)
        e("v_and_b32 v76, 7, v0\nv_lshl_add_u32 v1, v76, 5, v1")
        e("ds_write_b128 v1, v[64:67]\nds_write_b128 v1, v[68:71] offset:16")

    def compute(self, r):
        e = self.e
        sRG, sCG, sSL, sDL, sN = 73, 74, 75, 76, 77
        e.label("L_compute_" + r.name)
        if r is F:
            e("s_cmp_lg_u32 s2, 0\ns_cbranch_scc1 L_not_leader\ns_waitcnt lgkmcnt(0)")
            self.srd(WS, PWS, WS_SIZE)
            self.srd(DBG, PDBG, 256)
            e("s_lshl_b32 s64, s%d, 13\ns_add_u32 s64, s64, 0x%x\nv_lshlrev_b32 v1, 7, v0", sW, WS_FLAGS)
            e("v_mov_b32 v4, 0\nv_mov_b32 v5, 0\nv_mov_b32 v6, 0\nv_mov_b32 v7, 0")
            e("buffer_store_dwordx4 v[4:7], v1, s[%d:%d], s64 offen sc1", WS, WS + 3)
            e("s_lshl_b32 s64, s%d, 2\nv_mov_b32 v1, s64\nv_mov_b32 v2, 1\ns_waitcnt vmcnt(0)\ns_mov_b64 exec, 1", sW)
            e("buffer_store_dword v2, v1, s[%d:%d], 0 offen sc1\ns_mov_b64 exec, -1", DBG, DBG + 3)
            e.label("L_not_leader")
        self.service(r)
        e("s_lshr_b32 s%d, s%d, 1\ns_and_b32 s%d, s%d, 1", sRG, sW, sCG, sW)
        self.srd(WS, PWS, WS_SIZE)
        self.srd(OUT, POUT, 2621440)
        self.srd(DBG, PDBG, 256)
        self.phase2_ids(r)
        nct = r.nct
        Wb = (32, 64) if r is Q else (32, 56)
        Xb = (96, 112)
        acc = (lambda ct, mt: 128 + (ct * 4 + mt) * 4)
        for k in range(nct * 16):
            e("v_mov_b32 v%d, 0", 128 + k)
        self.service_finish(r)
        vG, vJ = 30, 31
        e("v_lshrrev_b32 v%d, 4, v0\nv_and_b32 v%d, 15, v0", vG, vJ)
        e("v_lshrrev_b32 v1, 1, v%d\nv_xor_b32 v1, v1, v%d\nv_lshlrev_b32 v1, 4, v1\nv_lshl_add_u32 v1, v%d, 7, v1", vJ, vG, vJ)
        e("s_lshl_b32 s64, s%d, 13\nv_add_u32 v2, s64, v1\nv_xor_b32 v3, 64, v2", sRG)
        if r is Q:
            e("v_and_b32 v1, 1, v%d\nv_lshlrev_b32 v1, 7, v1\nv_lshl_add_u32 v1, v%d, 12, v1", vG, vG)
            e("v_lshrrev_b32 v8, 2, v%d\nv_mul_u32_u24 v8, 480, v8\nv_add_u32 v1, v1, v8", vJ)
            e("s_mul_i32 s64, s%d, 80\ns_add_u32 s64, s64, 16384\nv_add_u32 v1, s64, v1", sCG)
            e("v_and_b32 v8, 3, v%d\nv_lshl_add_u32 v4, v8, 3, v1", vJ)
            e("v_and_b32 v9, 1, v8\nv_mul_u32_u24 v9, 40, v9\nv_add_u32 v6, v1, v9\nv_add_u32 v6, 32, v6")
            e("v_lshrrev_b32 v9, 1, v8\nv_mul_u32_u24 v9, 160, v9\nv_add_u32 v5, v6, v9\nv_add_u32 v5, 160, v5")
            waddr = [(4, 0), (4, 40), (6, 0), (4, 160), (4, 200), (5, 0), (4, 320), (4, 360)]
            wkk, wrd, aregs = 16384, 1920, [2, 3, 4, 5, 6]
        else:
            e("v_mul_u32_u24 v1, 3072, v%d\nv_lshrrev_b32 v10, 2, v%d\nv_lshl_add_u32 v1, v10, 7, v1", vG, vJ)
            e("v_and_b32 v10, 3, v%d\nv_lshl_add_u32 v1, v10, 3, v1\nv_add_u32 v1, 16384, v1", vJ)
            e("v_and_b32 v10, 1, v%d\nv_lshlrev_b32 v10, 1, v10\nv_bfe_u32 v11, v%d, 3, 1\nv_or_b32 v10, v10, v11", vG, vJ)
            for jj in range(6):
                e("s_mul_i32 s64, s%d, 6\ns_add_u32 s64, s64, %d\ns_and_b32 s65, s64, 3\ns_lshr_b32 s64, s64, 2\ns_lshl_b32 s64, s64, 10", sCG, jj)
                e("v_xor_b32 v11, s65, v10\nv_lshl_add_u32 v11, v11, 5, v1\nv_add_u32 v%d, s64, v11", 4 + jj)
            waddr = [(4 + jj, 0) for jj in range(6)]
            wkk, wrd, aregs = 12288, 512, [2, 3, 4, 5, 6, 7, 8, 9]

        def reads(buf, kk):
            out = []
            for mt in range(4):
                out.append("ds_read_b128 %s, v%d offset:%d" % (vr(Xb[buf] + 4 * mt, 4), 2 + kk, 2048 * mt))
            for ct in range(nct):
                a, off = waddr[ct]
                for rd in range(2):
                    out.append("ds_read_b64_tr_b16 %s, v%d offset:%d" % (vr(Wb[buf] + 4 * ct + 2 * rd, 2), a, off + kk * wkk + rd * wrd))
            return out

        def mfmas(buf):
            out = []
            for ct in range(nct):
                for mt in range(4):
                    w, x, d = vr(Wb[buf] + 4 * ct, 4), vr(Xb[buf] + 4 * mt, 4), vr(acc(ct, mt), 4)
                    a, b = (x, w) if (r is Q and ct >= 3) else (w, x)
                    out.append("v_mfma_f32_16x16x32_bf16 %s, %s, %s, %s" % (d, a, b, d))
            return out

        e("s_mov_b32 s%d, 0\ns_mov_b32 s%d, 10", sSL, sN)
        e("s_waitcnt lgkmcnt(0)\ns_barrier")
        self.stamp(2)
        for l in reads(0, 0):
            e(l)
        loop = "L_k_" + r.name
        e.label(loop)
        e("s_waitcnt lgkmcnt(0)")
        for l in interleave(mfmas(0), reads(1, 1)):
            e(l)
        e("s_mov_b32 s%d, %d\ns_cmp_eq_u32 s%d, 0\ns_cselect_b32 s%d, %d, s%d\ns_cselect_b32 s64, 3, s%d\ns_sub_u32 s%d, s64, 1",
          sDL, -r.slot & 0xffffffff, sSL, sDL, 2 * r.slot, sDL, sSL, sSL)
        e("s_waitcnt lgkmcnt(0)\ns_barrier")
        upd = ["v_add_u32 v%d, s%d, v%d" % (a, sDL, a) for a in aregs]
        for l in interleave(mfmas(1), ["\n".join(upd[:4]), "\n".join(upd[4:])] + reads(0, 0)):
            e(l)
        e("s_sub_u32 s%d, s%d, 1\ns_cmp_lg_u32 s%d, 0\ns_cbranch_scc1 %s", sN, sN, sN, loop)
        e("s_waitcnt lgkmcnt(0)")
        self.stamp(3)
        if r is F:
            self.epilogue_f(acc, sRG, sCG, vG, vJ)
        else:
            self.epilogue_q(acc, sRG, sCG, vG, vJ)
        self.phase2(r, sRG, sCG, vG, vJ)

    def epilogue_f(self, acc, sRG, sCG, vG, vJ):
        e = self.e
        r = F
        CSr, PAR, T = 32, 56, 72
        e("s_lshl_b32 s64, s%d, 10\ns_add_u32 s64, s64, %d\nv_lshrrev_b32 v1, 3, v%d\nv_lshl_add_u32 v1, v1, 7, s64\nv_and_b32 v2, 7, v%d\nv_lshl_add_u32 v1, v2, 2, v1",
          sRG, r.st, vJ, vJ)
        for mt in range(4):
            e("ds_read2_b32 v[%d:%d], v1 offset0:%d offset1:%d\nds_read_b32 v%d, v1 offset:%d",
              PAR + 4 * mt, PAR + 4 * mt + 1, mt * 64, mt * 64 + 8, PAR + 4 * mt + 2, mt * 256 + 64)
        e("s_mul_i32 s64, s%d, 384\ns_add_u32 s64, s64, %d\nv_lshl_add_u32 v2, v%d, 4, s64", sCG, r.cs, vG)
        for jj in range(6):
            e("ds_read_b128 %s, v2 offset:%d", vr(CSr + 4 * jj, 4), jj * 64)
        e("s_lshl_b32 s64, s%d, 3\ns_lshl_b32 s65, s%d, 2\ns_add_u32 s64, s64, s65\ns_mul_i32 s66, s64, %d", sRB, sRG, RT_STRIDE)
        e("s_mul_i32 s64, s%d, 6\ns_mul_i32 s65, s%d, 3\ns_add_u32 s64, s64, s65\ns_lshl_b32 s64, s64, 10\ns_add_u32 s66, s66, s64", sGRP, sCG)
        e("v_lshlrev_b32 v3, 4, v0\ns_waitcnt lgkmcnt(0)")
        for mt in range(4):
            e("v_sub_f32 v%d, 0, v%d\nv_mul_f32 v%d, 0x%x, v%d", PAR + 4 * mt, PAR + 4 * mt, PAR + 4 * mt + 1, f2u(-LOG2E), PAR + 4 * mt + 1)
        k = 0
        for mt in range(4):
            p = vr(PAR + 4 * mt, 2)
            sg = vr(PAR + 4 * mt + 2, 2)
            for j in range(3):
                t = T + 8 * (k % 2)
                o = T + 16 + 4 * (k % 4)
                k += 1
                prs = [(acc(2 * j + h, mt) + 2 * q, CSr + 4 * (2 * j + h) + 2 * q, t + 4 * h + 2 * q) for h in range(2) for q in range(2)]
                for a, c, w in prs:
                    e("v_pk_fma_f32 %s, %s, %s, %s op_sel_hi:[1,0,1]", vr(a, 2), vr(c, 2), p, vr(a, 2))
                for a, c, w in prs:
                    e("v_pk_mul_f32 %s, %s, %s op_sel:[0,1] op_sel_hi:[1,1]", vr(w, 2), vr(a, 2), p)
                for i in range(8):
                    e("v_exp_f32 v%d, v%d", t + i, t + i)
                for a, c, w in prs:
                    e("v_pk_fma_f32 %s, %s, %s, %s op_sel_hi:[1,0,0]", vr(w, 2), vr(w, 2), sg, sg)
                for i in range(8):
                    e("v_rcp_f32 v%d, v%d", t + i, t + i)
                for a, c, w in prs:
                    e("v_pk_mul_f32 %s, %s, %s", vr(w, 2), vr(w, 2), vr(a, 2))
                for i in range(4):
                    e("v_cvt_pk_bf16_f32 v%d, v%d, v%d", o + i, t + 2 * i, t + 2 * i + 1)
                e("buffer_store_dwordx4 %s, v3, s[%d:%d], s66 offen offset:%d sc1", vr(o, 4), WS, WS + 3, j * 1024)
            if mt < 3:
                e("s_add_u32 s66, s66, %d", RT_STRIDE)
        self.stamp(4)
        e("s_waitcnt vmcnt(0)")
        self.stamp(5)
        e("s_barrier\ns_barrier")

    def phi(self, prs, eps_pair, t):
        e = self.e
        for i, (u, d) in enumerate(prs):
            e("v_pk_mul_f32 %s, %s, s[78:79]", vr(t + 2 * i, 2), vr(u, 2))
        for i in range(2 * len(prs)):
            e("v_exp_f32_e64 v%d, v%d clamp", t + i, t + i)
        for i, (u, d) in enumerate(prs):
            e("v_max_f32 v%d, s80, v%d\nv_max_f32 v%d, s80, v%d", t + 8 + 2 * i, u, t + 9 + 2 * i, u + 1)
        for i, (u, d) in enumerate(prs):
            e("v_pk_add_f32 %s, %s, %s", vr(t + 2 * i, 2), vr(t + 2 * i, 2), vr(t + 8 + 2 * i, 2))
        for i, (u, d) in enumerate(prs):
            e("v_cvt_pk_bf16_f32 v%d, v%d, v%d", d, t + 2 * i, t + 2 * i + 1)

    def epilogue_q(self, acc, sRG, sCG, vG, vJ):
        e = self.e
        r = Q
        PAR, CSK, CSV, CSX, T, XB, P = 32, 64, 66, 68, 70, 92, 100
        e("s_mov_b32 s78, 0x%x\ns_mov_b32 s79, 0x%x\ns_mov_b32 s80, 0x%x\ns_mov_b32 s81, 0x%x", f2u(LOG2E), f2u(LOG2E), f2u(1e-6), f2u(1e-6))
        e("s_lshl_b32 s64, s%d, 10\ns_add_u32 s64, s64, %d\nv_lshrrev_b32 v1, 1, v%d\nv_lshl_add_u32 v1, v1, 7, s64\nv_and_b32 v2, 1, v%d\nv_lshl_add_u32 v1, v2, 4, v1",
          sRG, r.st, vG, vG)
        for mt in range(4):
            e("ds_read_b128 %s, v1 offset:%d\nds_read_b128 %s, v1 offset:%d", vr(PAR + 8 * mt, 4), mt * 256, vr(PAR + 8 * mt + 4, 4), mt * 256 + 32)
        e("s_mul_i32 s64, s%d, 160\ns_add_u32 s64, s64, %d\nv_lshl_add_u32 v2, v%d, 2, s64", sCG, r.cs, vJ)
        e("ds_read2_b32 v[%d:%d], v2 offset0:80 offset1:100\nds_read2_b32 v[%d:%d], v2 offset0:160 offset1:180", CSK, CSK + 1, CSV, CSV + 1)
        e("v_lshrrev_b32 v3, 3, v%d\nv_mul_u32_u24 v3, 320, v3\nv_bfe_u32 v4, v%d, 2, 1\nv_mul_u32_u24 v4, 80, v4\nv_add_u32 v3, v3, v4", vJ, vJ)
        e("v_and_b32 v4, 3, v%d\nv_lshl_add_u32 v3, v4, 2, v3\nv_add_u32 v3, s64, v3\nds_read_b32 v%d, v3 offset:384", vJ, CSX)
        e("v_cmp_gt_u32 s[82:83], 8, v%d\nv_mov_b32 v4, 0\nv_mov_b32 v5, s80\nv_cndmask_b32 v%d, v4, v5, s[82:83]", vJ, CSX + 1)
        e("v_mov_b32 v6, 0x3f803f80\ns_waitcnt lgkmcnt(0)")
        for mt in range(4):
            for q in range(2):
                m, s = vr(PAR + 8 * mt + 2 * q, 2), vr(PAR + 8 * mt + 4 + 2 * q, 2)
                e("v_pk_mul_f32 %s, %s, %s neg_lo:[1,0] neg_hi:[1,0]", m, m, s)

        def norm(ct, mt, cs, hi, eps):
            sel = "op_sel:[0,%d%s] op_sel_hi:[1,%d%s]"
            for q in range(2):
                rm, t = vr(PAR + 8 * mt + 2 * q, 2), vr(T + 16 + 2 * q, 2)
                if eps == "s":
                    e("v_pk_fma_f32 %s, %s, %s, s[80:81] " + sel % (hi, ",0", hi, ",1"), t, rm, vr(cs, 2))
                elif eps == "v":
                    e("v_pk_fma_f32 %s, %s, %s, %s " + sel % (0, ",1", 0, ",1"), t, rm, vr(cs, 2), vr(cs, 2))
                else:
                    e("v_pk_mul_f32 %s, %s, %s " + sel % (hi, "", hi, ""), t, rm, vr(cs, 2))
            for q in range(2):
                a = vr(acc(ct, mt) + 2 * q, 2)
                e("v_pk_fma_f32 %s, %s, %s, %s", a, a, vr(PAR + 8 * mt + 4 + 2 * q, 2), vr(T + 16 + 2 * q, 2))

        for m in range(2):
            for h in range(2):
                mt = 2 * m + h
                for ct, hi in ((6, 0), (7, 1)):
                    norm(ct, mt, CSV, hi, None)
                    for q in range(2):
                        e("v_cvt_pk_bf16_f32 v%d, v%d, v%d", acc(ct, 2 * m) + 2 * h + q, acc(ct, mt) + 2 * q, acc(ct, mt) + 2 * q + 1)
                norm(3, mt, CSK, 0, "s")
                norm(4, mt, CSK, 1, "s")
                self.phi([(acc(ct, mt) + 2 * q, acc(ct, 2 * m) + 2 * h + q) for ct in (3, 4) for q in range(2)], None, T)
                norm(5, mt, CSX, 0, "v")
                for q in range(2):
                    e("v_cvt_pk_bf16_f32 v%d, v%d, v%d", T + 18 + q, acc(5, mt) + 2 * q, acc(5, mt) + 2 * q + 1)
                for q in range(2):
                    e("v_cndmask_b32 v%d, v%d, v6, s[82:83]", XB + 4 * m + 2 * h + q, T + 18 + q)
                self.phi([(acc(5, mt) + 2 * q, acc(5, 2 * m) + 2 * h + q) for q in range(2)], None, T)
            KA, KB, XA, VA, VB = (vr(acc(ct, 2 * m), 4) for ct in (3, 4, 5, 6, 7))
            xb = vr(XB + 4 * m, 4)
            for i, (a, b) in enumerate(((KA, VA), (KA, xb), (XA, VA), (KB, VB), (KB, xb), (XA, VB), (XA, xb))):
                d = vr(P + 4 * i, 4)
                e("v_mfma_f32_16x16x32_bf16 %s, %s, %s, %s", d, a, b, d if m else "0")
        e("s_mul_i32 s64, s%d, 6720\ns_mul_i32 s65, s%d, 3360\ns_add_u32 s64, s64, s65\ns_add_u32 s64, s64, %d", sRG, sCG, r.scat)
        e("v_mul_u32_u24 v1, 80, v%d\nv_add_u32 v1, s64, v1\nv_lshl_add_u32 v2, v%d, 4, v1", vJ, vG)
        e("v_and_b32 v3, 3, v%d\nv_mul_u32_u24 v3, 80, v3\nv_add_u32 v3, 1280, v3\nv_mov_b32 v4, 1600\nv_cmp_eq_u32 vcc, 0, v%d\nv_cndmask_b32 v3, v3, v4, vcc", vJ, vJ)
        e("v_add_u32 v3, s64, v3\nv_lshl_add_u32 v4, v%d, 4, v3\nv_mul_u32_u24 v5, 1680, v%d\nv_add_u32 v1, v1, v5\nv_add_u32 v3, v3, v5", vG, vG)

        def mask(fn):
            m = sum(1 << l for l in range(64) if fn(l >> 4, l & 15))
            e("s_mov_b32 exec_lo, 0x%x\ns_mov_b32 exec_hi, 0x%x", m & 0xffffffff, m >> 32)
        ina = lambda n: n == 0 or 8 <= n < 12
        inb = lambda n: n == 0 or 12 <= n
        e("ds_write_b128 v2, %s\nds_write_b128 v2, %s offset:1680", vr(P, 4), vr(P + 12, 4))
        mask(lambda g, n: ina(n))
        e("ds_write_b128 v4, %s", vr(P + 4, 4))
        mask(lambda g, n: inb(n))
        e("ds_write_b128 v4, %s offset:1680", vr(P + 16, 4))
        mask(lambda g, n: g == 0)
        e("ds_write_b128 v1, %s offset:64", vr(P + 8, 4))
        mask(lambda g, n: g == 1)
        e("ds_write_b128 v1, %s offset:64", vr(P + 20, 4))
        mask(lambda g, n: (g == 0 and ina(n)) or (g == 1 and inb(n)))
        e("ds_write_b128 v3, %s offset:64", vr(P + 24, 4))
        e("s_mov_b64 exec, -1")
        e("s_lshl_b32 s64, s%d, 10\ns_add_u32 s64, s64, %d\nv_lshrrev_b32 v1, 3, v%d\nv_lshl_add_u32 v1, v1, 7, s64\nv_and_b32 v2, 7, v%d\nv_lshl_add_u32 v1, v2, 2, v1",
          sRG, r.st, vJ, vJ)
        for mt in range(4):
            e("ds_read2_b32 v[%d:%d], v1 offset0:%d offset1:%d", PAR + 2 * mt, PAR + 2 * mt + 1, mt * 64, mt * 64 + 8)
        CQ = 40
        e("s_mul_i32 s64, s%d, 160\ns_add_u32 s64, s64, %d\nv_lshl_add_u32 v2, v%d, 4, s64", sCG, r.cs, vG)
        e("ds_read_b128 %s, v2\nds_read_b128 %s, v2 offset:80", vr(CQ, 4), vr(CQ + 4, 4))
        e("v_and_b32 v2, 1, v%d\nv_mul_u32_u24 v2, 80, v2\nv_add_u32 v2, s64, v2\nds_read_b128 %s, v2 offset:64", vG, vr(CQ + 8, 4))
        e("s_waitcnt lgkmcnt(0)\ns_barrier")
        self.stamp(4)
        for mt in range(4):
            e("v_mul_f32_e64 v%d, -v%d, v%d", PAR + 2 * mt, PAR + 2 * mt, PAR + 2 * mt + 1)
        dst = {0: 0, 2: 2, 1: 4}
        for mt in range(4):
            p = vr(PAR + 2 * mt, 2)
            for grp in ((0, 2), (1,)):
                for ct in grp:
                    for q in range(2):
                        e("v_pk_fma_f32 %s, %s, %s, s[80:81] op_sel_hi:[1,0,1]", vr(T + 16 + 2 * q, 2), vr(CQ + 4 * ct + 2 * q, 2), p)
                    for q in range(2):
                        a = vr(acc(ct, mt) + 2 * q, 2)
                        e("v_pk_fma_f32 %s, %s, %s, %s op_sel:[0,1,0] op_sel_hi:[1,1,1]", a, a, p, vr(T + 16 + 2 * q, 2))
                self.phi([(acc(ct, mt) + 2 * q, 8 + 6 * mt + dst[ct] + q) for ct in grp for q in range(2)], None, T)
        self.stamp(5)

    def ostage(self, sRG, sCG):
        e = self.e
        AO, D, T = 160, 184, 232
        vG, vJ = T, T + 1
        e("v_lshrrev_b32 v%d, 4, v0\nv_and_b32 v%d, 15, v0", vG, vJ)
        e("s_mul_i32 s64, s%d, 1680\ns_add_u32 s64, s64, %d", sCG, Q.kvsum)
        e("v_mul_u32_u24 v%d, 40, v%d\nv_add_u32 v%d, s64, v%d", T + 2, vJ, T + 2, T + 2)
        e("v_and_b32 v%d, 3, v%d\nv_mul_u32_u24 v%d, 40, v%d\nv_add_u32 v%d, s64, v%d\nv_add_u32 v%d, 640, v%d", T + 3, vJ, T + 3, T + 3, T + 3, T + 3, T + 3, T + 3)
        e("v_mov_b32 v%d, s64\nv_add_u32 v%d, 800, v%d", T + 4, T + 4, T + 4)
        for k in range(3):
            e("v_lshl_add_u32 v%d, v%d, 3, v%d", T + 5 + k, vG, T + 2 + k)
        for h in range(2):
            for k in range(3):
                lo = AO + 12 * h + 4 * k + (2 if h else 0)
                hi = AO + 12 * h + 4 * k + (0 if h else 2)
                e("v_mov_b32 v%d, 0\nv_mov_b32 v%d, 0", hi, hi + 1)
                e("ds_read_b64 %s, v%d offset:%d", vr(lo, 2), T + 5 + k, 840 * h)
        for h in range(2):
            e("s_mov_b32 exec_lo, 0x%x\ns_mov_b32 exec_hi, 0", 0xffff << (16 * h))
            for k in range(3):
                hi = AO + 12 * h + 4 * k + (0 if h else 2)
                e("ds_read_b64 %s, v%d offset:%d", vr(hi, 2), T + 2 + k, 840 * h + 32)
        e("s_mov_b64 exec, -1")
        e("s_lshl_b32 s64, s%d, 3\ns_lshl_b32 s65, s%d, 2\ns_add_u32 s64, s64, s65\ns_mul_i32 s66, s64, %d", sRB, sRG, RT_STRIDE)
        e("s_lshl_b32 s64, s%d, 1\ns_add_u32 s64, s64, s%d\ns_lshl_b32 s65, s64, 10\ns_add_u32 s67, s66, s65\ns_add_u32 s67, s67, %d", sGRP, sCG, 48 * 1024)
        e("s_lshr_b32 s65, s64, 2\ns_lshl_b32 s65, s65, 10\ns_and_b32 s64, s64, 3\ns_lshl_b32 s64, s64, 8\ns_add_u32 s66, s66, s65\ns_add_u32 s66, s66, s64\ns_add_u32 s66, s66, %d", 64 * 1024)
        e("v_lshlrev_b32 v%d, 4, v0\ns_waitcnt lgkmcnt(0)", T + 8)
        for half in range(2):
            for i in range(2):
                mt = 2 * half + i
                for h in range(2):
                    for k in range(3):
                        e("v_mfma_f32_16x16x32_bf16 %s, %s, %s, 0", vr(D + 24 * i + 12 * h + 4 * k, 4), vr(AO + 12 * h + 4 * k, 4), vr(8 + 6 * mt + 2 * h, 4))
            for i in range(2):
                d = D + 24 * i
                o = T + 10 + 0
                for h in range(2):
                    e("v_add_f32 v%d, 0x%x, v%d", d + 12 * h + 8, f2u(1e-6), d + 12 * h + 8)
                for h in range(2):
                    e("v_rcp_f32 v%d, v%d", d + 12 * h + 8, d + 12 * h + 8)
                for h in range(2):
                    for q in range(4):
                        a = vr(d + 12 * h + 2 * q, 2)
                        e("v_pk_mul_f32 %s, %s, %s op_sel_hi:[1,0]", a, a, vr(d + 12 * h + 8, 2))
                o = T + 12 + 0 if i == 0 else AO - 8
                o2 = o + 4
                for h in range(2):
                    for q in range(2):
                        e("v_cvt_pk_bf16_f32 v%d, v%d, v%d", o + 2 * h + q, d + 12 * h + 2 * q, d + 12 * h + 2 * q + 1)
                        e("v_cvt_pk_bf16_f32 v%d, v%d, v%d", o2 + 2 * h + q, d + 12 * h + 4 + 2 * q, d + 12 * h + 5 + 2 * q)
                e("buffer_store_dwordx4 %s, v%d, s[%d:%d], s67 offen sc1", vr(o, 4), T + 8, WS, WS + 3)
                e("s_mov_b64 exec, 0xffff")
                e("buffer_store_dwordx4 %s, v%d, s[%d:%d], s66 offen sc1", vr(o2, 4), T + 8, WS, WS + 3)
                e("s_mov_b64 exec, -1\ns_add_u32 s66, s66, %d\ns_add_u32 s67, s67, %d", RT_STRIDE, RT_STRIDE)

    def phase2(self, r, sRG, sCG, vG, vJ):
        e = self.e
        sN, sAI, sBI, sDA, sDB = 77, 75, 76, 78, 79
        rw = r.rt // 2
        FR, ACC = 32, 128
        per = 4 * rw + 8
        e("v_lshrrev_b32 v152, 4, v0\nv_and_b32 v153, 15, v0")
        vG, vJ = 152, 153
        e("s_mul_i32 s64, s%d, %d\nv_lshl_add_u32 v2, v0, 4, s64", sRG, rw * 1024)
        e("v_lshrrev_b32 v1, 2, v0\nv_lshrrev_b32 v3, 3, v0\nv_and_b32 v3, 3, v3\ns_lshl_b32 s64, s%d, 1\nv_xor_b32 v3, s64, v3", sCG)
        e("v_lshlrev_b32 v3, 5, v3\nv_lshl_add_u32 v3, v1, 7, v3\nv_and_b32 v1, 3, v0\nv_lshl_add_u32 v3, v1, 3, v3")
        e("v_add_u32 v3, %d, v3\nv_xor_b32 v4, 32, v3", r.bbase + r.bidx(0) * 16384)
        e("v_bfe_u32 v1, v%d, 1, 2\nv_xor_b32 v1, s64, v1\nv_lshlrev_b32 v1, 5, v1\nv_lshl_add_u32 v1, v%d, 7, v1\nv_lshl_add_u32 v1, v%d, 3, v1", vJ, vJ, vG)
        e("s_mul_i32 s64, s%d, %d\ns_add_u32 s64, s64, %d\nv_add_u32 v5, s64, v1\nv_xor_b32 v6, 32, v5", sRG, rw * 2048, r.xo)
        self.swz128(7, 1, 1280)
        for k in range(rw * 8):
            e("v_mov_b32 v%d, 0", ACC + k)
        e("s_mov_b32 s%d, 0\ns_mov_b32 s%d, 0\ns_mov_b32 s%d, 0", sN, sAI, sBI)

        def reads(s):
            f = FR + per * s
            out = ["ds_read_b128 %s, v2 offset:%d" % (vr(f + 4 * k, 4), (s * r.rt + k) * 1024) for k in range(rw)]
            for u in range(2):
                for rd in range(2):
                    out.append("ds_read_b64_tr_b16 %s, v%d offset:%d" % (vr(f + 4 * rw + 4 * u + 2 * rd, 2), 3 + u, s * 4096 + rd * 2048))
            return out

        def mfmas(s):
            f = FR + per * s
            out = []
            for k in range(rw):
                for u in range(2):
                    d = vr(ACC + 8 * k + 4 * u, 4)
                    out.append("v_mfma_f32_16x16x32_bf16 %s, %s, %s, %s" % (d, vr(f + 4 * rw + 4 * u, 4), vr(f + 4 * k, 4), d))
            return out

        nr = rw + 4
        loop, back = "L_p2_" + r.name, "L_p2b_" + r.name
        e.label(loop)
        e("s_barrier")
        for l in reads(0) + reads(1):
            e(l)
        e("s_mov_b32 s%d, %d\ns_add_u32 s%d, s%d, 1\ns_cmp_eq_u32 s%d, 3\ns_cselect_b32 s%d, %d, s%d\ns_cselect_b32 s%d, 0, s%d",
          sDA, r.aslot, sAI, sAI, sAI, sDA, -2 * r.aslot & 0xffffffff, sDA, sAI, sAI)
        step = 16384 if r is F else -16384
        e("s_mov_b32 s%d, %d\ns_add_u32 s%d, s%d, 1\ns_cmp_eq_u32 s%d, %d\ns_cselect_b32 s%d, %d, s%d\ns_cselect_b32 s%d, 0, s%d",
          sDB, step & 0xffffffff, sBI, sBI, sBI, r.nb, sDB, -(r.nb - 1) * step & 0xffffffff, sDB, sBI, sBI)
        e("s_waitcnt lgkmcnt(%d)", nr)
        for l in interleave(mfmas(0), reads(2)):
            e(l)
        e("s_waitcnt lgkmcnt(%d)", nr)
        for l in interleave(mfmas(1), reads(3)):
            e(l)
        e("s_waitcnt lgkmcnt(%d)", nr)
        for l in interleave(mfmas(2), ["v_add_u32 v2, s%d, v2" % sDA, "v_add_u32 v3, s%d, v3" % sDB, "v_add_u32 v4, s%d, v4" % sDB]):
            e(l)
        e("s_waitcnt lgkmcnt(0)")
        for l in mfmas(3):
            e(l)
        if r is Q:
            e("s_cmp_eq_u32 s%d, %d\ns_cbranch_scc1 L_ostage\ns_cmp_eq_u32 s%d, %d\ns_cbranch_scc1 L_oflag", sN, O_STAGE, sN, O_FLAG - 1)
        e.label(back)
        e("s_add_u32 s%d, s%d, 1\ns_cmp_lg_u32 s%d, 17\ns_cbranch_scc1 %s", sN, sN, sN, loop)
        self.stamp(12)
        for k in range(rw):
            for u in range(2):
                e("ds_read_b64 %s, v%d offset:%d", vr(FR + 4 * k + 2 * u, 2), 5 + u, k * 2048)
        e("s_waitcnt lgkmcnt(0)")
        for k in range(rw):
            for u in range(2):
                x, a, t = FR + 4 * k + 2 * u, ACC + 8 * k + 4 * u, 64
                e("v_lshlrev_b32 v%d, 16, v%d\nv_and_b32 v%d, 0xffff0000, v%d\nv_lshlrev_b32 v%d, 16, v%d\nv_and_b32 v%d, 0xffff0000, v%d",
                  t, x, t + 1, x, t + 2, x + 1, t + 3, x + 1)
                e("v_pk_add_f32 %s, %s, %s\nv_pk_add_f32 %s, %s, %s", vr(a, 2), vr(a, 2), vr(t, 2), vr(a + 2, 2), vr(a + 2, 2), vr(t + 2, 2))
                e("v_cvt_pk_bf16_f32 v%d, v%d, v%d\nv_cvt_pk_bf16_f32 v%d, v%d, v%d", x, a, a + 1, x + 1, a + 2, a + 3)
                e("ds_write_b64 v%d, %s offset:%d", 5 + u, vr(x, 2), k * 2048)
        e("s_waitcnt lgkmcnt(0)")
        e.label("L_final_" + r.name)
        e("s_barrier")
        e("s_lshl_b32 s64, s%d, 10\ns_add_u32 s64, s64, %d\nv_lshl_add_u32 v1, v0, 4, s64\nds_read_b128 v[8:11], v1", sWAVE, r.xo)
        if r is F:
            e("ds_read_b128 v[12:15], v1 offset:8192")
        e("s_mul_i32 s66, s%d, 20480\ns_lshl_b32 s65, s%d, 7\ns_add_u32 s66, s66, s65\ns_mul_i32 s65, s%d, 10240\ns_add_u32 s66, s66, s65",
          sRT0, sCBG, sWAVE)
        e("s_waitcnt lgkmcnt(0)")
        e("buffer_store_dwordx4 v[8:11], v7, s[%d:%d], s66 offen", OUT, OUT + 3)
        if r is F:
            e("s_cmp_ge_u32 s%d, 4\ns_cbranch_scc1 L_done_F\ns_add_u32 s66, s66, 81920", sWAVE)
            e("buffer_store_dwordx4 v[12:15], v7, s[%d:%d], s66 offen", OUT, OUT + 3)
            e.label("L_done_F")
        self.stamp(13)
        self.stamp_flush()
        e("s_endpgm")
        if r is Q:
            e.label("L_ostage")
            self.stamp(8)
            self.ostage(sRG, sCG)
            self.stamp(9)
            e("s_branch " + back)
            e.label("L_oflag")
            e("s_waitcnt vmcnt(0)")
            self.stamp(10)
            e("s_branch " + back)

    def build(self):
        e = self.e
        self.entry()
        e("s_cmp_lt_u32 s%d, 4\ns_cbranch_scc1 L_compute_F", sWAVE)
        self.loader(F)
        self.compute(F)
        e.label("L_role_Q")
        e("s_cmp_lt_u32 s%d, 4\ns_cbranch_scc1 L_compute_Q", sWAVE)
        self.loader(Q)
        self.compute(Q)
        e.label("L_end")
        e("s_endpgm")
        body = fix_hazards(e.L)
        head = open("parallel_sum__linear_attn_block__dense_activation_silu__prompt.s.ref").read()
        head = head.split("; Override launch geometry")[0]
        out = [head.rstrip(),
               "; One persistent launch: 256 workgroups of 8 waves (4 matrix waves, 4 loader waves).",
               "; @launch grid=(256,1,1) block=(512,1,1) lds=163840",
               '.amdgcn_target "amdgcn-amd-amdhsa--gfx950"', ".text", ".globl " + KNAME, ".p2align 8",
               ".type %s,@function" % KNAME, KNAME + ":"]
        out += [l if l.endswith(":") else "    " + l for l in body]
        out += ['.section .rodata,"a"', ".p2align 6", ".amdhsa_kernel " + KNAME,
                "  .amdhsa_next_free_vgpr 256", "  .amdhsa_next_free_sgpr 102", "  .amdhsa_accum_offset 256",
                "  .amdhsa_group_segment_fixed_size 0", "  .amdhsa_kernarg_size 72", "  .amdhsa_user_sgpr_count 2",
                "  .amdhsa_user_sgpr_kernarg_segment_ptr 1", "  .amdhsa_system_sgpr_workgroup_id_x 1", ".end_amdhsa_kernel"]
        return "\n".join(out) + "\n"


if __name__ == "__main__":
    path = sys.argv[1]
    open(path, "w").write(Gen(stamps="cyc" if "--cyc" in sys.argv else "--stamps" in sys.argv,
                               dbgwg=int(sys.argv[sys.argv.index("--dbg") + 1]) if "--dbg" in sys.argv else None).build())
```

```python
import sys, re
import kern as K
src = open(sys.argv[1]).read()
KN = K.KNAME
main = "; @launch kernel=%s grid=(256,1,1) block=(512,1,1) lds=163840" % KN
desc = lambda n, v: '''.p2align 6
.amdhsa_kernel %s
  .amdhsa_next_free_vgpr %d
  .amdhsa_next_free_sgpr 64
  .amdhsa_accum_offset %d
  .amdhsa_group_segment_fixed_size 0
  .amdhsa_kernarg_size 72
  .amdhsa_user_sgpr_count 2
  .amdhsa_user_sgpr_kernarg_segment_ptr 1
  .amdhsa_system_sgpr_workgroup_id_x 1
.end_amdhsa_kernel
''' % (n, v, v)
empty = ".p2align 8\n.type empty_kernel,@function\nempty_kernel:\n    s_endpgm\n"
def pf():
    L = [".p2align 8\n.type pf_kernel,@function\npf_kernel:", "s_cmp_ge_u32 s2, 256\ns_cbranch_scc1 L_pf_end",
         "s_load_dwordx16 s[36:51], s[0:1], 0\ns_waitcnt lgkmcnt(0)", "v_lshlrev_b32 v1, 4, v0"]
    r = 4
    for p, size in ((36, 2621440), (38, 2457600), (40, 819200), (44, 1966080), (46, 1966080)):
        L.append("s_mov_b32 s8, s%d\ns_mov_b32 s9, s%d\ns_mov_b32 s10, %d\ns_mov_b32 s11, 0x20000" % (p, p+1, size))
        per = -(-size // (256*4096))
        L.append("s_mul_i32 s3, s2, %d" % (per*4096))
        for i in range(per):
            L.append("buffer_load_dwordx4 v[%d:%d], v1, s[8:11], s3 offen\ns_add_u32 s3, s3, 4096" % (r, r+3)); r += 4
    L.append("s_waitcnt vmcnt(0)\nL_pf_end:\ns_endpgm\n")
    return "\n".join(L)
def mk(lines, extra_code, extra_desc):
    s = re.sub(r"; @launch grid.*", "\n".join(lines), src)
    s = s.replace('.section .rodata,"a"', extra_code + '.section .rodata,"a"')
    return s + extra_desc
open("l_em.s", "w").write(mk(["; @launch kernel=empty_kernel grid=(1,1,1) block=(64,1,1) lds=0", main], empty, desc("empty_kernel", 8)))
open("l_me.s", "w").write(mk([main, "; @launch kernel=empty_kernel grid=(1,1,1) block=(64,1,1) lds=0"], empty, desc("empty_kernel", 8)))
open("l_pm.s", "w").write(mk(["; @launch kernel=pf_kernel grid=(256,1,1) block=(256,1,1) lds=0", main], pf(), desc("pf_kernel", 64)))
open("l_mm.s", "w").write(mk([main, main], "", ""))
open("l_m.s", "w").write(mk([main], "", ""))
```

```python
import sys, re
import kern as K
src = open(sys.argv[1]).read()
KN = K.KNAME
main = "; @launch kernel=%s grid=(256,1,1) block=(512,1,1) lds=163840" % KN
desc = lambda n, v: '''.p2align 6
.amdhsa_kernel %s
  .amdhsa_next_free_vgpr %d
  .amdhsa_next_free_sgpr 64
  .amdhsa_accum_offset %d
  .amdhsa_group_segment_fixed_size 0
  .amdhsa_kernarg_size 72
  .amdhsa_user_sgpr_count 2
  .amdhsa_user_sgpr_kernarg_segment_ptr 1
  .amdhsa_system_sgpr_workgroup_id_x 1
.end_amdhsa_kernel
''' % (n, v, v)
empty = ".p2align 8\n.type empty_kernel,@function\nempty_kernel:\n    s_endpgm\n"
def pf():
    L = [".p2align 8\n.type pf_kernel,@function\npf_kernel:", "s_cmp_ge_u32 s2, 256\ns_cbranch_scc1 L_pf_end",
         "s_load_dwordx16 s[36:51], s[0:1], 0\ns_waitcnt lgkmcnt(0)", "v_lshlrev_b32 v1, 4, v0"]
    r = 4
    for p, size in ((36, 2621440), (38, 2457600), (40, 819200), (44, 1966080), (46, 1966080)):
        L.append("s_mov_b32 s8, s%d\ns_mov_b32 s9, s%d\ns_mov_b32 s10, %d\ns_mov_b32 s11, 0x20000" % (p, p+1, size))
        per = -(-size // (256*4096))
        L.append("s_mul_i32 s3, s2, %d" % (per*4096))
        for i in range(per):
            L.append("buffer_load_dwordx4 v[%d:%d], v1, s[8:11], s3 offen\ns_add_u32 s3, s3, 4096" % (r, r+3)); r += 4
    L.append("s_waitcnt vmcnt(0)\nL_pf_end:\ns_endpgm\n")
    return "\n".join(L)
def pf2(code, tlb, data):
    L = [".p2align 8\n.type pf_kernel,@function\npf_kernel:", "s_cmp_ge_u32 s2, 256\ns_cbranch_scc1 L_pf_end",
         "s_load_dwordx16 s[36:51], s[0:1], 0\ns_load_dwordx2 s[52:53], s[0:1], 64\ns_waitcnt lgkmcnt(0)", "v_lshlrev_b32 v1, 4, v0"]
    r = 4
    if data:
      for p, size in ((36, 2621440), (38, 2457600), (40, 819200), (44, 1966080), (46, 1966080)):
        L.append("s_mov_b32 s8, s%d\ns_mov_b32 s9, s%d\ns_mov_b32 s10, %d\ns_mov_b32 s11, 0x20000" % (p, p+1, size))
        per = -(-size // (256*4096))
        L.append("s_mul_i32 s3, s2, %d" % (per*4096))
        for i in range(per):
            L.append("buffer_load_dwordx4 v[%d:%d], v1, s[8:11], s3 offen\ns_add_u32 s3, s3, 4096" % (r, r+3)); r += 4
    if tlb:
        L.append("v_lshlrev_b32 v2, 16, v0")
        for p, size in ((52, 0xB00000), (48, 2621440), (50, 256), (36, 2621440), (38, 2457600), (40, 819200), (44, 1966080), (46, 1966080)):
            L.append("s_mov_b32 s8, s%d\ns_mov_b32 s9, s%d\ns_mov_b32 s10, %d\ns_mov_b32 s11, 0x20000" % (p, p+1, size))
            L.append("buffer_load_dword v%d, v2, s[8:11], 0 offen" % r); r += 1
    if code:
        L.append("s_getpc_b64 s[8:9]\nL_pc:\ns_sub_u32 s8, s8, L_pc-%s\ns_subb_u32 s9, s9, 0\ns_mov_b32 s10, L_pc-%s\ns_mov_b32 s11, 0x20000" % (KN, KN))
        L.append("v_lshlrev_b32 v2, 7, v0\nbuffer_load_dword v%d, v2, s[8:11], 0 offen\nv_add_u32 v2, 0x8000, v2\nbuffer_load_dword v%d, v2, s[8:11], 0 offen" % (r, r+1))
    L.append("s_waitcnt vmcnt(0)\nL_pf_end:\ns_endpgm\n")
    return "\n".join(L)
def mk(lines, extra_code, extra_desc):
    s = re.sub(r"; @launch grid.*", "\n".join(lines), src)
    s = s.replace('.section .rodata,"a"', extra_code + '.section .rodata,"a"')
    return s + extra_desc
open("l_em.s", "w").write(mk(["; @launch kernel=empty_kernel grid=(1,1,1) block=(64,1,1) lds=0", main], empty, desc("empty_kernel", 8)))
open("l_me.s", "w").write(mk([main, "; @launch kernel=empty_kernel grid=(1,1,1) block=(64,1,1) lds=0"], empty, desc("empty_kernel", 8)))
open("l_pm.s", "w").write(mk(["; @launch kernel=pf_kernel grid=(256,1,1) block=(256,1,1) lds=0", main], pf(), desc("pf_kernel", 64)))
open("l_mm.s", "w").write(mk([main, main], "", ""))
open("l_m.s", "w").write(mk([main], "", ""))

pl = "; @launch kernel=pf_kernel grid=(256,1,1) block=(256,1,1) lds=0"
for nm, a in (("l_c", (1,0,0)), ("l_t", (0,1,0)), ("l_ct", (1,1,0)), ("l_ctd", (1,1,1)), ("l_0", (0,0,0))):
    open(nm + ".s", "w").write(mk([pl, main], pf2(*a), desc("pf_kernel", 80)))
```

```python
import sys
from asmlib import Asm, VmTrack, fix_hazards, interleave, f2u, vr, sr

KNAME = "parallel_sum__linear_attn_block__dense_activation_silu__prompt_kernel"

RT_STRIDE = 68 * 1024
WS_STATS = 0x880000
WS_CSUM = 0x888000
CSUM_Q = 13824
WS_KVP = 0x896000
KVP_RB = 3456
WS_FLAGS = 0x902000
WS_STAMP = 0xA00000
WS_SIZE = 0xB00000
OOB = 0x40000000
SPIN_MAX = 1 << 16
KV_CHECK, O_STAGE, O_FLAG = 2, 4, 6

X, W1, W2, WO, WS, OUT, DBG, TMPD = 8, 12, 16, 20, 24, 28, 32, 4
PX, PQKV, PWO, PW1, PW2, POUT, PDBG, PWS = 36, 38, 40, 44, 46, 48, 50, 52
sWAVE, sRB, sGRP, sC16, sP, sB_, sCBG, sRT0, sKT = 54, 55, 56, 57, 58, 59, 60, 61, 62
sW, sI, sT0, sT1, sT2, sT3 = 63, 3, 64, 65, 66, 67
sSTAMP = 84
LOG2E = 1.4426950408889634


class Role:
    pass


F = Role()
F.name, F.slot, F.scr, F.nct = "F", 40960, 151552, 6
F.rt, F.aslot, F.xo, F.bbase, F.nb = 6, 24576, 73728, 86016, 4
F.bidx = lambda n: n % 4
Q = Role()
Q.name, Q.slot, Q.scr, Q.nct = "Q", 49152, 147456, 8
Q.rt, Q.aslot, Q.xo, Q.bbase, Q.nb = 4, 16384, 49152, 65536, 5
Q.bidx = lambda n: 4 - n % 5
Q.scat, Q.kvsum = 49152, 57344
for r_ in (F, Q):
    r_.svc, r_.svc2, r_.st, r_.cs = r_.scr, r_.scr + 4096, r_.scr + 4608, r_.scr + 6656


def role_of(w):
    return (w >> 5) & 1


def slot_of(t):
    return (9 - t) % 3


class Gen:
    def __init__(self, stamps=False, dbgwg=None, opt=()):
        self.e = Asm()
        self.dbgwg = dbgwg
        self.opt = opt
        self.who = ("comp", "load")
        self.stamps = stamps

    def srd(self, d, p, size):
        self.e("s_mov_b32 s%d, s%d\ns_mov_b32 s%d, s%d\ns_mov_b32 s%d, 0x%x\ns_mov_b32 s%d, 0x20000",
               d, p, d + 1, p + 1, d + 2, size, d + 3)

    def stamp(self, k, name="t"):
        if self.stamps:
            for who in self.who:
                self.e.L.append("; stamp %s %d %s" % (who, k, name))
            self.e(("s_memtime" if self.stamps == "cyc" else "s_memrealtime") + " s[68:69]\ns_waitcnt lgkmcnt(0)\ns_mov_b32 s%d, s68", sSTAMP + k)

    def stamp_flush(self):
        if not self.stamps:
            return
        e = self.e
        e("s_lshl_b32 s64, s2, 3\ns_add_u32 s64, s64, s%d\ns_lshl_b32 s64, s64, 6\ns_add_u32 s64, s64, 0x%x", sWAVE, WS_STAMP)
        e("v_mov_b32 v1, 0")
        for k in range(16):
            e("v_writelane_b32 v1, s%d, %d", sSTAMP + k, k)
        e("v_lshlrev_b32 v2, 2, v0\ns_mov_b64 exec, 0xffff")
        e("buffer_store_dword v1, v2, s[%d:%d], s64 offen", WS, WS + 3)
        if self.dbgwg is not None:
            skip = e.newlabel("nodbg")
            e("s_cmp_lg_u32 s2, %d\ns_cbranch_scc1 %s\ns_cmp_lg_u32 s%d, 4\ns_cbranch_scc1 %s", self.dbgwg, skip, sWAVE, skip)
            e("v_subrev_u32 v1, s%d, v1\ns_mov_b64 exec, 0xfff0", sSTAMP)
            e("buffer_store_dword v1, v2, s[%d:%d], 0 offen", DBG, DBG + 3)
            e.label(skip)
        e("s_mov_b64 exec, -1")

    def swz128(self, dst, tmp, stride):
        e = self.e
        e("v_lshrrev_b32 v%d, 4, v0\nv_lshlrev_b32 v%d, 1, v%d\nv_xor_b32 v%d, v%d, v0\nv_and_b32 v%d, 7, v%d",
          tmp, tmp, tmp, tmp, tmp, tmp, tmp)
        e("v_lshlrev_b32 v%d, 4, v%d\nv_lshrrev_b32 v%d, 3, v0\nv_mul_u32_u24 v%d, %d, v%d\nv_add_u32 v%d, v%d, v%d",
          tmp, tmp, dst, dst, stride, dst, dst, dst, tmp)

    def spin(self, vm, vdst, vaddr, srd, want, first_issued):
        e = self.e
        ok, again = e.newlabel("ok"), e.newlabel("spin")
        if first_issued:
            vm.wait(first_issued)
        e("s_cmp_lg_u32 s%d, 0\ns_cbranch_scc1 %s", sW, ok)
        if first_issued:
            e("v_cmp_le_u32 vcc, %d, v%d\ns_cmp_eq_u64 vcc, -1\ns_cbranch_scc1 %s", want, vdst, ok)
        e("s_mov_b32 s%d, %d", sT3, SPIN_MAX)
        e.label(again)
        e("buffer_load_dword v%d, v%d, s[%d:%d], 0 offen sc1", vdst, vaddr, srd, srd + 3)
        e("s_waitcnt vmcnt(0)")
        e("v_cmp_le_u32 vcc, %d, v%d\ns_cmp_eq_u64 vcc, -1\ns_cbranch_scc1 %s", want, vdst, ok)
        e("s_sleep 4\ns_sub_u32 s%d, s%d, 1\ns_cmp_lg_u32 s%d, 0\ns_cbranch_scc1 %s", sT3, sT3, sT3, again)
        e.label(ok)

    def set_flag(self, vm, vaddr, word, vtmp):
        self.e("v_mov_b32 v%d, 1", vtmp)
        vm.issue("flag", "buffer_store_dword v%d, v%d, s[%d:%d], 0 offen offset:%d sc1", vtmp, vaddr, WS, WS + 3, 4 * word)

    def entry(self):
        e = self.e
        e("s_cmp_ge_u32 s2, 256\ns_cbranch_scc1 L_end")
        e("s_load_dwordx16 s[36:51], s[0:1], 0\ns_load_dwordx2 s[52:53], s[0:1], 64")
        if "nopf" not in self.opt:
            e("s_getpc_b64 s[4:5]")
            e.label("L_pc")
            e("s_mov_b32 s6, L_end-L_pc\ns_mov_b32 s7, 0x20000\ns_lshr_b32 s3, s2, 3\ns_mul_i32 s3, s3, 1280")
            e("v_lshlrev_b32 v1, 7, v0\nv_cmp_gt_u32 vcc, 20, v0\ns_and_saveexec_b64 s[64:65], vcc\ns_cbranch_execz L_nopf")
            e("buffer_load_dword v90, v1, s[4:7], s3 offen")
            e.label("L_nopf")
            e("s_mov_b64 exec, s[64:65]")
        e("v_lshrrev_b32 v1, 6, v0\nv_and_b32 v0, 63, v0\nv_readfirstlane_b32 s%d, v1", sWAVE)
        e("s_lshr_b32 s%d, s2, 3", sI)
        e("s_bfe_u32 s%d, s2, 0x20001\ns_and_b32 s%d, s2, 1", sP, sB_)
        e("s_and_b32 s64, s%d, 3\ns_lshl_b32 s%d, s%d, 2\ns_add_u32 s%d, s%d, s64", sI, sRB, sP, sRB, sRB)
        e("s_lshr_b32 s65, s%d, 2\ns_lshl_b32 s%d, s%d, 3\ns_add_u32 s%d, s%d, s65", sI, sC16, sB_, sC16, sC16)
        e("s_lshr_b32 s66, s%d, 3\ns_lshl_b32 s%d, s%d, 2\ns_add_u32 s%d, s%d, s66", sI, sGRP, sB_, sGRP, sGRP)
        e("s_mul_i32 s67, s64, 3\ns_add_u32 s%d, s%d, s67\ns_add_u32 s%d, s%d, s%d", sKT, sC16, sKT, sKT, sP)
        for _ in range(2):
            e("s_sub_u32 s67, s%d, 10\ns_cmp_ge_u32 s%d, 10\ns_cselect_b32 s%d, s67, s%d", sKT, sKT, sKT, sKT)
        e("s_and_b32 s%d, s%d, 3", sW, sWAVE)
        e("s_lshl_b32 s66, s66, 2\ns_add_u32 s70, s66, s64")
        self.stamp(0, "entry")
        e("s_bitcmp1_b32 s%d, 2\ns_cbranch_scc1 L_role_Q", sI)

    def phase2_ids(self, r):
        e = self.e
        if r is F:
            e("s_lshr_b32 s64, s70, 2\ns_and_b32 s65, s70, 3")
            e("s_sub_u32 s66, s70, 12\ns_lshr_b32 s67, s66, 1\ns_add_u32 s67, s67, 3\ns_and_b32 s66, s66, 1")
            e("s_cmp_ge_u32 s70, 12\ns_cselect_b32 s64, s67, s64\ns_cselect_b32 s65, s66, s65\ns_mul_i32 s65, s65, 6")
        else:
            e("s_lshr_b32 s64, s70, 1\ns_and_b32 s65, s70, 1\ns_add_u32 s65, s65, 6")
            e("s_sub_u32 s66, s70, 3\ns_sub_u32 s67, s70, 8\ns_cmp_ge_u32 s70, 11\ns_cselect_b32 s66, s67, s66\ns_cselect_b32 s67, 4, 3")
            e("s_cmp_ge_u32 s70, 6\ns_cselect_b32 s64, s67, s64\ns_cselect_b32 s65, s66, s65\ns_lshl_b32 s65, s65, 2")
        e("s_mul_i32 s%d, s%d, 5\ns_add_u32 s%d, s%d, s64", sCBG, sB_, sCBG, sCBG)
        e("s_lshl_b32 s%d, s%d, 5\ns_add_u32 s%d, s%d, s65", sRT0, sP, sRT0, sRT0)
        e("s_mul_i32 s66, s65, 3\ns_lshr_b32 s66, s66, 3\ns_mul_i32 s67, s%d, 5\ns_add_u32 s71, s66, s67", sCBG)
        e("s_mul_i32 s66, s71, 43\ns_lshr_b32 s66, s66, 9\ns_mul_i32 s66, s66, 12\ns_sub_u32 s71, s71, s66")
        e("s_and_b32 s72, s71, 3")

    def loader(self, r):
        e = self.e
        vm = VmTrack(e)
        vA, vB, vB2, vBX, vL16, vT, vU, vPOLL, vHF, vOF, vKF = 2, 3, 4, 5, 6, 7, 8, 9, 10, 11, 12
        vCSA, vL4, vKVA, vMY, vSF, vGF = 13, 14, 15, 28, 29, 30
        sA, sBo, sW1K, sWB = 73, 74, 75, 76
        sTA, sTB, sAT, sBT, sBTo = 77, 78, 79, 80, 81
        EXB = 82
        self.who = ("load",)
        e.label("L_loader_" + r.name)
        e("s_and_b32 s64, s%d, 1\ns_lshl_b32 s64, s64, 2", sW)
        e("v_lshrrev_b32 v1, 4, v0\nv_add_u32 v1, s64, v1\nv_xor_b32 v1, v1, v0\nv_and_b32 v1, 7, v1\nv_lshlrev_b32 v1, 4, v1")
        e("s_lshl_b32 s65, s%d, 3\nv_lshrrev_b32 v%d, 3, v0\nv_add_u32 v%d, s65, v%d", sW, vT, vT, vT)
        e("v_mul_u32_u24 v%d, 1280, v%d\nv_add_u32 v%d, v%d, v1", vA, vT, vA, vA)
        e("s_lshl_b32 s%d, s%d, 10", sW1K, sW)
        if r is Q:
            e("s_lshl_b32 s64, s%d, 6\nv_add_u32 v1, s64, v0", sW)
            e("v_mul_u32_u24 v%d, 2185, v1\nv_lshrrev_b32 v%d, 16, v%d", vB, vB, vB)
            e("v_mul_u32_u24 v%d, 30, v%d\nv_sub_u32 v1, v1, v%d", vU, vB, vU)
            e("v_mul_u32_u24 v%d, 26, v1\nv_lshrrev_b32 v%d, 8, v%d\nv_mul_u32_u24 v%d, 1120, v%d", vU, vU, vU, vU, vU)
            e("v_mul_u32_u24 v%d, 3840, v%d\nv_lshl_add_u32 v%d, v1, 4, v%d\nv_add_u32 v%d, v%d, v%d", vB, vB, vB, vB, vB, vB, vU)
            e("s_mov_b32 s%d, -1\ns_cmp_eq_u32 s%d, 3\ns_cselect_b32 s%d, 0xffff, -1", EXB, sW, EXB + 1)
            e("s_mov_b32 s%d, s%d", sWB, sW1K)
        else:
            e("s_and_b32 s64, s%d, 1\ns_lshl_b32 s64, s64, 2", sW)
            e("v_bfe_u32 v1, v0, 4, 1\nv_lshlrev_b32 v1, 1, v1\nv_add_u32 v1, s64, v1\nv_xor_b32 v1, v1, v0\nv_and_b32 v1, 7, v1")
            e("v_lshlrev_b32 v1, 4, v1\nv_mul_u32_u24 v%d, 3072, v%d\nv_add_u32 v%d, v%d, v1", vB, vT, vB, vB)
            e("s_mul_i32 s%d, s%d, 3072", sWB, sW)
        e("s_waitcnt lgkmcnt(0)")
        self.srd(X, PX, 2621440)
        if r is Q:
            self.srd(W1, PQKV, 640 * 1920 * 2)
        else:
            self.srd(W1, PW1, 640 * 1536 * 2)

        def tile(t):
            base = slot_of(t) * r.slot
            e("s_mul_i32 s%d, s%d, 163840\ns_lshl_b32 s64, s%d, 7\ns_add_u32 s%d, s%d, s64", sA, sRB, sKT, sA, sA)
            for j in range(4):
                e("s_add_u32 m0, s%d, %d\ns_add_u32 s64, s%d, %d", sW1K, base + 4096 * j, sA, 40960 * j)
                vm.issue("t%d" % t, "buffer_load_dwordx4 v%d, s[%d:%d], s64 offen lds", vA, X, X + 3)
            if r is Q:
                e("s_mul_i32 s%d, s%d, 160\ns_mul_i32 s64, s%d, 245760\ns_add_u32 s%d, s%d, s64", sBo, sGRP, sKT, sBo, sBo)
                e("s_mov_b64 exec, s[%d:%d]", EXB, EXB + 1)
                for c in range(8):
                    e("s_add_u32 m0, s%d, %d\ns_add_u32 s64, s%d, %d", sWB, base + 16384 + c * 4096 + (c & 1) * 128, sBo, c * 30720)
                    vm.issue("t%d" % t, "buffer_load_dwordx4 v%d, s[%d:%d], s64 offen lds", vB, W1, W1 + 3)
                e("s_mov_b64 exec, -1")
            else:
                e("s_mul_i32 s%d, s%d, 384\ns_mul_i32 s64, s%d, 196608\ns_add_u32 s%d, s%d, s64", sBo, sGRP, sKT, sBo, sBo)
                for cc in range(2):
                    for a in range(3):
                        e("s_add_u32 m0, s%d, %d\ns_add_u32 s64, s%d, %d", sWB, base + 16384 + cc * 12288 + a * 1024, sBo, cc * 98304 + 128 * a)
                        vm.issue("t%d" % t, "buffer_load_dwordx4 v%d, s[%d:%d], s64 offen lds", vB, W1, W1 + 3)
            e("s_add_u32 s%d, s%d, 1\ns_cmp_eq_u32 s%d, 10\ns_cselect_b32 s%d, 0, s%d", sKT, sKT, sKT, sKT, sKT)

        for t in range(2):
            tile(t)
        self.stamp(1, "issued")
        self.srd(W2, PW2, 1536 * 640 * 2)
        self.srd(WO, PWO, 640 * 640 * 2)
        self.srd(WS, PWS, WS_SIZE)
        self.srd(OUT, POUT, 2621440)
        self.srd(DBG, PDBG, 256)
        self.phase2_ids(r)
        self.swz128(vB2, 1, 1280)
        e("v_lshrrev_b32 v1, 5, v0\nv_mul_u32_u24 v1, %d, v1\nv_add_u32 v%d, v%d, v1", 36 * 1280, vBX, vB2)
        e("v_lshlrev_b32 v%d, 4, v0\nv_lshlrev_b32 v%d, 2, v0", vL16, vL4)
        e("s_mov_b32 s67, 0x%x\ns_cmp_eq_u32 s%d, 0\ns_cselect_b32 s67, 0x%x, s67", OOB, sW, WS_FLAGS)
        e("s_lshr_b32 s64, s%d, 3\ns_add_u32 s65, s%d, %d\ns_lshr_b32 s65, s65, 3\ns_sub_u32 s65, s65, s64", sRT0, sRT0, r.rt - 1)
        e("s_lshl_b32 s64, s64, 10\ns_add_u32 s64, s64, s67\ns_lshl_b32 s65, s65, 10")
        e("v_bfe_u32 v1, v0, 3, 1\nv_mul_u32_u24 v1, s65, v1\nv_and_b32 v%d, 7, v0\nv_lshl_add_u32 v%d, v%d, 7, v1\nv_add_u32 v%d, s64, v%d",
          vHF, vHF, vHF, vHF, vHF)
        e("v_add_u32 v%d, %d, v%d\nv_add_u32 v%d, 4, v%d", vOF, 16384 + 8, vHF, vHF, vHF)
        e("s_lshl_b32 s64, s%d, 10\ns_lshl_b32 s65, s%d, 7\ns_add_u32 s64, s64, s65\ns_add_u32 s64, s64, s67\ns_add_u32 s64, s64, %d",
          sRB, sGRP, 16384 if r is Q else 0)
        e("v_mov_b32 v1, s64\nv_mov_b32 v%d, 0x%x\nv_cmp_eq_u32 vcc, 0, v0\nv_cndmask_b32 v%d, v%d, v1, vcc", vMY, OOB, vMY, vMY)
        e("v_subrev_u32 v1, 16, v0\nv_and_b32 v16, 3, v1\nv_lshrrev_b32 v1, 2, v1\ns_and_b32 s64, s%d, 3", sGRP)
        if r is Q:
            e("v_min_u32 v1, 5, v1\nv_lshrrev_b32 v17, 1, v1\nv_mul_u32_u24 v17, 5, v17\nv_and_b32 v1, 1, v1\nv_add_u32 v1, v1, v17\nv_add_u32 v1, s64, v1")
        else:
            e("v_min_u32 v1, 2, v1\ns_mul_i32 s64, s64, 3\ns_add_u32 s64, s64, 15\nv_add_u32 v1, s64, v1")
        e("v_lshlrev_b32 v16, 5, v16\nv_and_b32 v17, 3, v1\nv_lshl_add_u32 v16, v17, 3, v16\nv_lshrrev_b32 v17, 3, v1\nv_add_u32 v16, v16, v17")
        e("v_bfe_u32 v17, v1, 2, 1\nv_lshl_add_u32 v16, v17, 7, v16\ns_lshl_b32 s64, s%d, 2\nv_add_u32 v16, s64, v16", sB_)
        e("v_bfe_u32 v17, v0, 3, 1\nv_lshlrev_b32 v17, 7, v17\nv_and_b32 v1, 7, v0\nv_add_u32 v17, v17, v1\ns_lshl_b32 s64, s%d, 3\nv_add_u32 v17, s64, v17", sRB)
        e("v_cmp_gt_u32 vcc, 16, v0\nv_cndmask_b32 v16, v16, v17, vcc\nv_lshlrev_b32 v16, 7, v16\nv_add_u32 v%d, s67, v16", vSF)
        e("s_mov_b32 s64, 0x%x\ns_cmp_eq_u32 s%d, 0\ns_cselect_b32 s64, 0, s64\nv_and_b32 v1, 3, v0\nv_lshl_add_u32 v%d, v1, 2, s64", OOB, sW, vGF)
        if r is Q:
            e("s_lshl_b32 s64, s%d, 7\ns_add_u32 s64, s64, s67\ns_add_u32 s64, s64, %d\nv_and_b32 v1, 15, v0\nv_lshl_add_u32 v%d, v1, 10, s64",
              sGRP, 16384 + 4, vKF)
            e("s_lshl_b32 s64, s%d, 6\nv_add_u32 v1, s64, v0\nv_lshlrev_b32 v%d, 4, v1", sW, vKVA)
            e("s_mul_i32 s65, s%d, %d\ns_add_u32 s65, s65, 0x%x\nv_add_u32 v%d, s65, v%d", sGRP, 16 * KVP_RB, WS_KVP, vKVA, vKVA)
            e("v_mov_b32 v%d, 0x%x\nv_cmp_gt_u32 vcc, 210, v1\nv_cndmask_b32 v%d, v%d, v%d, vcc", vT, OOB, vKVA, vT, vKVA)
            e("v_mul_u32_u24 v%d, 205, v1\nv_lshrrev_b32 v%d, 14, v%d\nv_mul_u32_u24 v%d, 560, v%d\nv_add_u32 v%d, v%d, v1",
              vU, vU, vU, vU, vU, vU, vU)
            e("s_mul_i32 s65, s%d, 80\nv_add_u32 v%d, s65, v%d\nv_lshlrev_b32 v%d, 2, v%d\nv_add_u32 v%d, 0x%x, v%d",
              sGRP, vU, vU, vU, vU, vU, WS_CSUM, vU)
            e("v_cmp_gt_u32 vcc, 240, v1\nv_cndmask_b32 v%d, v%d, v%d, vcc", vCSA, vT, vU)
        else:
            e("s_lshl_b32 s64, s%d, 6\nv_add_u32 v1, s64, v0", sW)
            e("s_mul_i32 s65, s%d, 192\ns_add_u32 s65, s65, 1920\nv_add_u32 v%d, s65, v1\nv_lshlrev_b32 v%d, 2, v%d\nv_add_u32 v%d, 0x%x, v%d",
              sGRP, vU, vU, vU, vU, WS_CSUM, vU)
            e("v_mov_b32 v%d, 0x%x\nv_cmp_gt_u32 vcc, 192, v1\nv_cndmask_b32 v%d, v%d, v%d, vcc", vT, OOB, vCSA, vT, vU)

        e("s_mov_b32 s%d, s71\ns_mov_b32 s%d, s71", sTA, sTB)

        def adv(s, n):
            if n < 11:
                e("s_add_u32 s%d, s%d, 1\ns_cmp_eq_u32 s%d, 12\ns_cselect_b32 s%d, 0, s%d", s, s, s, s, s)
            elif n == 11:
                e("s_mov_b32 s%d, s72", s)
            elif n < 15:
                e("s_add_u32 s%d, s%d, 1\ns_and_b32 s%d, s%d, 3", s, s, s, s)

        def btile(n):
            base = r.bbase + r.bidx(n) * 16384
            e("s_lshl_b32 s65, s%d, 12\ns_lshl_b32 s66, s%d, 7", sW, sCBG)
            if n < 12:
                e("s_lshl_b32 s%d, s%d, 2\ns_add_u32 s%d, s%d, s%d\ns_mul_i32 s%d, s%d, 40960\ns_add_u32 s%d, s%d, s66",
                  sBT, sTB, sBT, sBT, sW, sBT, sBT, sBT, sBT)
                rows, srd, va = (0, 8, 16, 24), W2, vB2
            elif n < 16:
                e("s_lshl_b32 s%d, s%d, 2\ns_add_u32 s%d, s%d, s%d\ns_mul_i32 s%d, s%d, 51200\ns_add_u32 s%d, s%d, s66",
                  sBT, sTB, sBT, sBT, sW, sBT, sBT, sBT, sBT)
                rows, srd, va = (0, 8, 20, 28), WO, vB2
            else:
                e("s_mul_i32 s%d, s%d, 204800\ns_add_u32 s%d, s%d, s66", sBT, sW, sBT, sBT)
                rows, srd, va = (16, 96, 36, 116), WO, vBX
            for q in range(4):
                e("s_add_u32 m0, s65, %d\ns_add_u32 s64, s%d, %d", base + q * 1024, sBT, rows[q] * 1280)
                vm.issue("B%d" % n, "buffer_load_dwordx4 v%d, s[%d:%d], s64 offen lds", va, srd, srd + 3)
            adv(sTB, n)

        def atile(n):
            base = (n % 3) * r.aslot
            e("s_mul_i32 s65, s%d, %d\ns_mul_i32 s66, s%d, %d", sW, r.rt * 1024, sRT0, RT_STRIDE)
            if n < 16:
                e("s_lshl_b32 s%d, s%d, 2\ns_add_u32 s%d, s%d, s%d", sAT, sTA, sAT, sAT, sW)
                if n >= 12:
                    e("s_add_u32 s%d, s%d, 48", sAT, sAT)
            else:
                e("s_add_u32 s%d, s%d, 64", sAT, sW)
            e("s_lshl_b32 s%d, s%d, 10\ns_add_u32 s%d, s%d, s66", sAT, sAT, sAT, sAT)
            for k in range(r.rt):
                e("s_add_u32 m0, s65, %d\ns_add_u32 s64, s%d, %d", base + k * 1024, sAT, k * RT_STRIDE)
                vm.issue("A%d" % n, "buffer_load_dwordx4 v%d, s[%d:%d], s64 offen sc1 lds", vL16, WS, WS + 3)
            adv(sTA, n)

        def xotile():
            e("s_mul_i32 s66, s%d, 20480\ns_lshl_b32 s65, s%d, 7\ns_add_u32 s66, s66, s65\ns_mul_i32 s65, s%d, 10240\ns_add_u32 s66, s66, s65",
              sRT0, sCBG, sW)
            for j in range(r.rt // 2):
                e("s_add_u32 m0, s%d, %d\ns_add_u32 s64, s66, %d", sW1K, r.xo + j * 4096, j * 40960)
                vm.issue("XO", "buffer_load_dwordx4 v%d, s[%d:%d], s64 offen lds", vB2, X, X + 3)

        vm.wait("t0")
        e("s_barrier")
        self.stamp(2, "b0")
        tile(2)
        l1, l3, lj = (e.newlabel("svc") for _ in range(3))
        e("v_mov_b32 v%d, 0x%x\nv_mov_b32 v%d, 0", vT, OOB, vU)
        e("s_cmp_eq_u32 s%d, 1\ns_cbranch_scc1 %s\ns_cmp_ge_u32 s%d, 2\ns_cbranch_scc1 %s", sW, l1, sW, lj)
        e("v_add_u32 v1, %d, v%d", r.svc, vL4)
        for g in range(16):
            e("ds_read_b32 v%d, v1 offset:%d", 32 + g, g * 256)
        e("s_cmp_ge_u32 s%d, 27\ns_cbranch_scc1 %s", sI, l3)
        e("s_mul_i32 s64, s%d, 52\ns_lshr_b32 s64, s64, 8\ns_mul_i32 s64, s64, 320\ns_lshl_b32 s65, s%d, 6\ns_add_u32 s64, s64, s65", sI, sI)
        e("s_mul_i32 s65, s%d, 320\ns_add_u32 s64, s64, s65", sB_)
        e("s_mul_i32 s65, s%d, 768\ns_lshl_b32 s66, s%d, 6\ns_add_u32 s65, s65, s66\ns_add_u32 s65, s65, 960", sB_, sI)
        e("s_cmp_ge_u32 s%d, 15\ns_cselect_b32 s64, s65, s64\ns_lshl_b32 s64, s64, 2", sI)
        e("s_mul_i32 s65, s%d, %d\ns_add_u32 s64, s64, s65\ns_add_u32 s64, s64, 0x%x\nv_add_u32 v%d, s64, v%d", sP, CSUM_Q, WS_CSUM, vT, vL4)
        e.label(l3)
        e("s_waitcnt lgkmcnt(0)")
        for st in (8, 4, 2, 1):
            for g in range(st):
                e("v_add_f32 v%d, v%d, v%d", 32 + g, 32 + g, 32 + g + st)
        e("v_mov_b32 v%d, v32\ns_branch %s", vU, lj)
        e.label(l1)
        e("v_add_u32 v1, %d, v%d\nds_read_b32 v%d, v1", r.svc2, vL4, vU)
        e("s_lshl_b32 s64, s%d, 4\ns_add_u32 s64, s64, s%d\ns_lshl_b32 s64, s64, 7\ns_add_u32 s64, s64, 0x%x", sRB, sC16, WS_STATS)
        e("v_add_u32 v1, s64, v%d\nv_cmp_gt_u32 vcc, 32, v0\nv_cndmask_b32 v%d, v%d, v1, vcc\ns_waitcnt lgkmcnt(0)", vL4, vT, vT)
        e.label(lj)
        vm.issue("svc", "buffer_store_dword v%d, v%d, s[%d:%d], 0 offen sc1", vU, vT, WS, WS + 3)

        for t in range(10):
            n = t + 1
            if n <= 9:
                vm.wait("t%d" % n)
            if n == 3:
                vm.wait("svc")
                self.spin(vm, vPOLL, vGF, DBG, 1, "pg")
            if n == 7:
                self.spin(vm, vPOLL, vSF, WS, 1, "ps")
            if n == 9:
                vm.wait("cs")
                e("v_add_f32 v32, v32, v33\nv_add_f32 v34, v34, v35\nv_add_f32 v32, v32, v34")
                e("s_lshl_b32 s64, s%d, 8\ns_add_u32 s64, s64, %d\nv_add_u32 v1, s64, v%d\nds_write_b32 v1, v32\ns_waitcnt lgkmcnt(0)", sW, r.cs, vL4)
            e("s_barrier")
            if n in (1, 4, 7):
                self.stamp({1: 6, 4: 14, 7: 15}[n], "b%d" % n)
            if n == 1:
                vm.issue("pg", "buffer_load_dword v%d, v%d, s[%d:%d], 0 offen sc1", vPOLL, vGF, DBG, DBG + 3)
            if n == 3:
                self.set_flag(vm, vMY, 0, vU)
            if n == 5:
                vm.issue("ps", "buffer_load_dword v%d, v%d, s[%d:%d], 0 offen sc1", vPOLL, vSF, WS, WS + 3)
            if n + 2 <= 9:
                tile(n + 2)
            if n == 7:
                e("s_lshl_b32 s64, s%d, 11\ns_lshl_b32 s65, s%d, 9\ns_add_u32 s64, s64, s65\ns_add_u32 s64, s64, 0x%x", sRB, sW, WS_STATS)
                e("s_add_u32 m0, s65, %d\ns_mov_b32 exec_hi, 0", r.st)
                vm.issue("cs", "buffer_load_dwordx4 v%d, s[%d:%d], s64 offen sc1 lds", vL16, WS, WS + 3)
                e("s_mov_b64 exec, -1")
                for q in range(4):
                    e("s_mov_b32 s64, %d", q * CSUM_Q)
                    vm.issue("cs", "buffer_load_dword v%d, v%d, s[%d:%d], s64 offen sc1", 32 + q, vCSA, WS, WS + 3)
            if n == 8:
                for j in range(4 if r is F else 3):
                    btile(j)
            if n == 9 and r is Q:
                btile(3)
                btile(4)
        self.stamp(3, "b10")
        if r is F:
            xotile()
            e("s_barrier")
            self.set_flag(vm, vMY, 1, vU)
            self.spin(vm, vPOLL, vHF, WS, 1, None)
            self.stamp(4, "hpoll")
            e("s_barrier")
        else:
            self.spin(vm, vPOLL, vHF, WS, 1, None)
            self.stamp(4, "hpoll")
            e("s_barrier")
            self.stamp(5, "X1")
            e("s_lshl_b32 s64, s%d, 11\ns_add_u32 s64, s64, %d\nv_lshl_add_u32 v1, v0, 5, s64", sW, Q.scat)
            e("ds_read_b128 v[32:35], v1\nds_read_b128 v[36:39], v1 offset:16\nds_read_b128 v[40:43], v1 offset:6720\nds_read_b128 v[44:47], v1 offset:6736")
            e("s_mul_i32 s64, s%d, %d\ns_waitcnt lgkmcnt(0)", sRB, KVP_RB)
            for j in range(4):
                e("v_pk_add_f32 v[%d:%d], v[%d:%d], v[%d:%d]", 32 + 2 * j, 33 + 2 * j, 32 + 2 * j, 33 + 2 * j, 40 + 2 * j, 41 + 2 * j)
            for j in range(4):
                e("v_cvt_pk_bf16_f32 v%d, v%d, v%d", 48 + j, 32 + 2 * j, 33 + 2 * j)
            vm.issue("kvp", "buffer_store_dwordx4 v[48:51], v%d, s[%d:%d], s64 offen sc1", vKVA, WS, WS + 3)
        for n in range(3):
            atile(n)

        for n in range(17):
            if r is Q and n == KV_CHECK:
                self.spin(vm, vPOLL, vKF, WS, 1, "pk")
            if r is Q and n == O_STAGE:
                vm.wait("kvl")
                e("s_mov_b32 s64, 0x3f80\ns_mov_b32 s65, 0x3f800000")
                for j in range(8):
                    e("v_mov_b32 v%d, 0", 16 + j)
                for rb in range(16):
                    for j in range(4):
                        e("v_dot2c_f32_bf16 v%d, s64, v%d\nv_dot2c_f32_bf16 v%d, s65, v%d", 16 + 2 * j, 32 + 4 * rb + j, 17 + 2 * j, 32 + 4 * rb + j)
                for j in range(4):
                    e("v_cvt_pk_bf16_f32 v%d, v%d, v%d", 24 + j, 16 + 2 * j, 17 + 2 * j)
                e("s_lshl_b32 s64, s%d, 10\ns_add_u32 s64, s64, %d\nv_add_u32 v1, s64, v%d", sW, Q.kvsum, vL16)
                e("s_cmp_eq_u32 s%d, 3\ns_cselect_b32 exec_lo, 0x3ffff, -1\ns_cselect_b32 exec_hi, 0, -1", sW)
                e("ds_write_b128 v1, v[24:27]\ns_mov_b64 exec, -1\ns_waitcnt lgkmcnt(0)")
            if n == 10:
                self.spin(vm, vPOLL, vOF, WS, 1, "po")
                self.stamp(10, "opoll")
            vm.wait("A%d" % n)
            if n == 16:
                vm.wait_all()
            e("s_barrier")
            if n in (0, 3, 9, 12, 16):
                self.stamp({0: 7, 3: 8, 9: 9, 12: 11, 16: 12}[n], "p%d" % n)
            if r is Q and n == 0:
                self.set_flag(vm, vMY, 1, vU)
                xotile()
            if r is Q and n == KV_CHECK - 1:
                vm.issue("pk", "buffer_load_dword v%d, v%d, s[%d:%d], 0 offen sc1", vPOLL, vKF, WS, WS + 3)
            if r is Q and n == KV_CHECK:
                for rb in range(16):
                    e("s_mov_b32 s64, %d", rb * KVP_RB)
                    vm.issue("kvl", "buffer_load_dwordx4 v[%d:%d], v%d, s[%d:%d], s64 offen sc1", 32 + 4 * rb, 35 + 4 * rb, vKVA, WS, WS + 3)
            if r is Q and n == O_FLAG:
                self.set_flag(vm, vMY, 2, vU)
            if n == 9:
                vm.issue("po", "buffer_load_dword v%d, v%d, s[%d:%d], 0 offen sc1", vPOLL, vOF, WS, WS + 3)
            nb = n - 1 + r.nb
            if n >= 1:
                if n + 2 <= 16:
                    atile(n + 2)
                if nb <= 16:
                    btile(nb)
        e("v_mov_b32 v7, v%d", vB2)
        e("s_branch L_final_" + r.name)

    def service(self, r):
        e = self.e
        e("s_lshl_b32 s64, s%d, 4\ns_add_u32 s64, s64, s%d\ns_lshl_b32 s64, s64, 2\ns_add_u32 s64, s64, s%d\ns_lshl_b32 s64, s64, 1", sRB, sC16, sW)
        e("v_lshrrev_b32 v1, 5, v0\nv_add_u32 v1, s64, v1\nv_mul_u32_u24 v1, 1280, v1\nv_and_b32 v2, 31, v0\nv_lshl_add_u32 v1, v2, 4, v1")
        e("v_mov_b32 v3, 0x%x\nv_cmp_gt_u32 vcc, 16, v2\nv_cndmask_b32 v3, v3, v1, vcc", OOB)
        e("s_mul_i32 s64, s%d, 52\ns_lshr_b32 s64, s64, 8\ns_mul_i32 s64, s64, 320\ns_lshl_b32 s65, s%d, 6\ns_add_u32 s64, s64, s65", sI, sI)
        e("s_mul_i32 s65, s%d, 320\ns_add_u32 s64, s64, s65", sB_)
        e("s_mul_i32 s65, s%d, 768\ns_lshl_b32 s66, s%d, 6\ns_add_u32 s65, s65, s66\ns_sub_u32 s65, s65, 960", sB_, sI)
        e("s_cmp_ge_u32 s%d, 15\ns_cselect_b32 s64, s65, s64\ns_movk_i32 s65, 3840\ns_cselect_b32 s65, 3072, s65\ns_lshl_b32 s64, s64, 1", sI)
        e("s_mul_i32 s66, s%d, 160\ns_lshl_b32 s67, s%d, 3\ns_add_u32 s66, s66, s67", sP, sW)
        e("v_lshrrev_b32 v4, 3, v0\nv_add_u32 v4, s66, v4\nv_mul_lo_u32 v4, v4, s65\nv_and_b32 v5, 7, v0\nv_lshl_add_u32 v4, v5, 4, v4\nv_add_u32 v4, s64, v4")
        e("s_lshl_b32 s65, s65, 5")
        e("s_waitcnt lgkmcnt(0)")
        self.srd(X, PX, 2621440)
        e("s_cmp_ge_u32 s%d, 15\ns_cselect_b32 s%d, s%d, s%d\ns_cselect_b32 s%d, s%d, s%d", sI, TMPD, PW1, PQKV, TMPD + 1, PW1 + 1, PQKV + 1)
        e("s_mov_b32 s66, %d\ns_cselect_b32 s%d, %d, s66\ns_mov_b32 s%d, 0x20000", 640 * 1920 * 2, TMPD + 2, 640 * 1536 * 2, TMPD + 3)
        e("s_cmp_ge_u32 s%d, 27\ns_cselect_b32 s%d, 0, s%d", sI, TMPD + 2, TMPD + 2)
        e("buffer_load_dwordx4 v[32:35], v1, s[%d:%d], 0 offen", X, X + 3)
        e("buffer_load_dwordx4 v[36:39], v1, s[%d:%d], 0 offen offset:512", X, X + 3)
        e("buffer_load_dwordx4 v[40:43], v3, s[%d:%d], 0 offen offset:1024", X, X + 3)
        e("s_mov_b32 s66, 0")
        for j in range(5):
            e("buffer_load_dwordx4 v[%d:%d], v4, s[%d:%d], s66 offen", 44 + 4 * j, 47 + 4 * j, TMPD, TMPD + 3)
            if j < 4:
                e("s_add_u32 s66, s66, s65")

    def service_finish(self, r):
        e = self.e
        e("s_mov_b32 s64, 0x3f803f80\ns_mov_b32 s65, 0x3f80\ns_mov_b32 s66, 0x3f800000")
        for k in range(10):
            e("v_mov_b32 v%d, 0", 64 + k)
        e("s_waitcnt vmcnt(5)")
        for k in range(12):
            e("v_dot2c_f32_bf16 v72, s64, v%d\nv_dot2c_f32_bf16 v73, v%d, v%d", 32 + k, 32 + k, 32 + k)
        for ror in (8, 4, 2, 1):
            e("v_add_f32_dpp v72, v72, v72 row_ror:%d row_mask:0xf bank_mask:0xf", ror)
            e("v_add_f32_dpp v73, v73, v73 row_ror:%d row_mask:0xf bank_mask:0xf", ror)
        e("ds_swizzle_b32 v74, v72 offset:0x401F\nds_swizzle_b32 v75, v73 offset:0x401F")
        e("s_waitcnt vmcnt(0)")
        for j in range(5):
            for k in range(4):
                e("v_dot2c_f32_bf16 v%d, s65, v%d\nv_dot2c_f32_bf16 v%d, s66, v%d", 64 + 2 * k, 44 + 4 * j + k, 65 + 2 * k, 44 + 4 * j + k)
        e("s_waitcnt lgkmcnt(0)")
        e("v_add_f32 v72, v72, v74\nv_add_f32 v73, v73, v75")
        e("v_mul_f32 v72, 0x%x, v72\nv_mul_f32 v73, 0x%x, v73\nv_fma_f32 v73, -v72, v72, v73\nv_max_f32 v73, 0, v73\nv_add_f32 v73, 0x%x, v73",
          f2u(1.0 / 640), f2u(1.0 / 640), f2u(1e-5))
        e("v_rsq_f32 v74, v73\nv_sqrt_f32 v75, v73")
        for k in range(8):
            e("v_add_f32_dpp v%d, v%d, v%d row_ror:8 row_mask:0xf bank_mask:0xf", 64 + k, 64 + k, 64 + k)
        e("s_lshl_b32 s64, s%d, 3\ns_add_u32 s64, s64, %d\nv_lshrrev_b32 v1, 5, v0\nv_lshl_add_u32 v1, v1, 2, s64", sW, r.svc2)
        e("ds_write_b32 v1, v72\nds_write_b32 v1, v74 offset:32\nds_write_b32 v1, v75 offset:64")
        e("s_lshl_b32 s64, s%d, 10\ns_add_u32 s64, s64, %d\nv_lshrrev_b32 v1, 4, v0\nv_lshl_add_u32 v1, v1, 8, s64", sW, r.svc)
        e("v_and_b32 v76, 7, v0\nv_lshl_add_u32 v1, v76, 5, v1")
        e("ds_write_b128 v1, v[64:67]\nds_write_b128 v1, v[68:71] offset:16")

    def compute(self, r):
        e = self.e
        sRG, sCG, sSL, sDL, sN = 73, 74, 75, 76, 77
        self.who = ("comp",)
        e.label("L_compute_" + r.name)
        if r is F:
            e("s_cmp_lg_u32 s2, 0\ns_cbranch_scc1 L_not_leader\ns_waitcnt lgkmcnt(0)")
            self.srd(WS, PWS, WS_SIZE)
            self.srd(DBG, PDBG, 256)
            e("s_lshl_b32 s64, s%d, 13\ns_add_u32 s64, s64, 0x%x\nv_lshlrev_b32 v1, 7, v0", sW, WS_FLAGS)
            e("v_mov_b32 v4, 0\nv_mov_b32 v5, 0\nv_mov_b32 v6, 0\nv_mov_b32 v7, 0")
            e("buffer_store_dwordx4 v[4:7], v1, s[%d:%d], s64 offen sc1", WS, WS + 3)
            e("s_lshl_b32 s64, s%d, 2\nv_mov_b32 v1, s64\nv_mov_b32 v2, 1\ns_waitcnt vmcnt(0)\ns_mov_b64 exec, 1", sW)
            e("buffer_store_dword v2, v1, s[%d:%d], 0 offen sc1\ns_mov_b64 exec, -1", DBG, DBG + 3)
            e.label("L_not_leader")
        self.service(r)
        e("s_lshr_b32 s%d, s%d, 1\ns_and_b32 s%d, s%d, 1", sRG, sW, sCG, sW)
        self.srd(WS, PWS, WS_SIZE)
        self.srd(OUT, POUT, 2621440)
        self.srd(DBG, PDBG, 256)
        self.phase2_ids(r)
        nct = r.nct
        Wb = (32, 64) if r is Q else (32, 56)
        Xb = (96, 112)
        acc = (lambda ct, mt: 128 + (ct * 4 + mt) * 4)
        for k in range(nct * 16):
            e("v_mov_b32 v%d, 0", 128 + k)
        self.service_finish(r)
        vG, vJ = 30, 31
        e("v_lshrrev_b32 v%d, 4, v0\nv_and_b32 v%d, 15, v0", vG, vJ)
        e("v_lshrrev_b32 v1, 1, v%d\nv_xor_b32 v1, v1, v%d\nv_lshlrev_b32 v1, 4, v1\nv_lshl_add_u32 v1, v%d, 7, v1", vJ, vG, vJ)
        e("s_lshl_b32 s64, s%d, 13\nv_add_u32 v2, s64, v1\nv_xor_b32 v3, 64, v2", sRG)
        if r is Q:
            e("v_and_b32 v1, 1, v%d\nv_lshlrev_b32 v1, 7, v1\nv_lshl_add_u32 v1, v%d, 12, v1", vG, vG)
            e("v_lshrrev_b32 v8, 2, v%d\nv_mul_u32_u24 v8, 480, v8\nv_add_u32 v1, v1, v8", vJ)
            e("s_mul_i32 s64, s%d, 80\ns_add_u32 s64, s64, 16384\nv_add_u32 v1, s64, v1", sCG)
            e("v_and_b32 v8, 3, v%d\nv_lshl_add_u32 v4, v8, 3, v1", vJ)
            e("v_and_b32 v9, 1, v8\nv_mul_u32_u24 v9, 40, v9\nv_add_u32 v6, v1, v9\nv_add_u32 v6, 32, v6")
            e("v_lshrrev_b32 v9, 1, v8\nv_mul_u32_u24 v9, 160, v9\nv_add_u32 v5, v6, v9\nv_add_u32 v5, 160, v5")
            waddr = [(4, 0), (4, 40), (6, 0), (4, 160), (4, 200), (5, 0), (4, 320), (4, 360)]
            wkk, wrd, aregs = 16384, 1920, [2, 3, 4, 5, 6]
        else:
            e("v_mul_u32_u24 v1, 3072, v%d\nv_lshrrev_b32 v10, 2, v%d\nv_lshl_add_u32 v1, v10, 7, v1", vG, vJ)
            e("v_and_b32 v10, 3, v%d\nv_lshl_add_u32 v1, v10, 3, v1\nv_add_u32 v1, 16384, v1", vJ)
            e("v_and_b32 v10, 1, v%d\nv_lshlrev_b32 v10, 1, v10\nv_bfe_u32 v11, v%d, 3, 1\nv_or_b32 v10, v10, v11", vG, vJ)
            for jj in range(6):
                e("s_mul_i32 s64, s%d, 6\ns_add_u32 s64, s64, %d\ns_and_b32 s65, s64, 3\ns_lshr_b32 s64, s64, 2\ns_lshl_b32 s64, s64, 10", sCG, jj)
                e("v_xor_b32 v11, s65, v10\nv_lshl_add_u32 v11, v11, 5, v1\nv_add_u32 v%d, s64, v11", 4 + jj)
            waddr = [(4 + jj, 0) for jj in range(6)]
            wkk, wrd, aregs = 12288, 512, [2, 3, 4, 5, 6, 7, 8, 9]

        def reads(buf, kk):
            out = []
            for mt in range(4):
                out.append("ds_read_b128 %s, v%d offset:%d" % (vr(Xb[buf] + 4 * mt, 4), 2 + kk, 2048 * mt))
            for ct in range(nct):
                a, off = waddr[ct]
                for rd in range(2):
                    out.append("ds_read_b64_tr_b16 %s, v%d offset:%d" % (vr(Wb[buf] + 4 * ct + 2 * rd, 2), a, off + kk * wkk + rd * wrd))
            return out

        def mfmas(buf):
            out = []
            for ct in range(nct):
                for mt in range(4):
                    w, x, d = vr(Wb[buf] + 4 * ct, 4), vr(Xb[buf] + 4 * mt, 4), vr(acc(ct, mt), 4)
                    a, b = (x, w) if (r is Q and ct >= 3) else (w, x)
                    out.append("v_mfma_f32_16x16x32_bf16 %s, %s, %s, %s" % (d, a, b, d))
            return out

        e("s_mov_b32 s%d, 0\ns_mov_b32 s%d, 10", sSL, sN)
        e("s_waitcnt lgkmcnt(0)\ns_barrier")
        self.stamp(2, "b0")
        for l in reads(0, 0):
            e(l)
        loop = "L_k_" + r.name
        e.label(loop)
        e("s_waitcnt lgkmcnt(0)")
        for l in interleave(mfmas(0), reads(1, 1)):
            e(l)
        e("s_mov_b32 s%d, %d\ns_cmp_eq_u32 s%d, 0\ns_cselect_b32 s%d, %d, s%d\ns_cselect_b32 s64, 3, s%d\ns_sub_u32 s%d, s64, 1",
          sDL, -r.slot & 0xffffffff, sSL, sDL, 2 * r.slot, sDL, sSL, sSL)
        e("s_waitcnt lgkmcnt(0)\ns_barrier")
        upd = ["v_add_u32 v%d, s%d, v%d" % (a, sDL, a) for a in aregs]
        for l in interleave(mfmas(1), ["\n".join(upd[:4]), "\n".join(upd[4:])] + reads(0, 0)):
            e(l)
        e("s_sub_u32 s%d, s%d, 1\ns_cmp_lg_u32 s%d, 0\ns_cbranch_scc1 %s", sN, sN, sN, loop)
        e("s_waitcnt lgkmcnt(0)")
        self.stamp(3, "kend")
        if r is F:
            self.epilogue_f(acc, sRG, sCG, vG, vJ)
        else:
            self.epilogue_q(acc, sRG, sCG, vG, vJ)
        self.phase2(r, sRG, sCG, vG, vJ)

    def epilogue_f(self, acc, sRG, sCG, vG, vJ):
        e = self.e
        r = F
        CSr, PAR, T = 32, 56, 72
        e("s_lshl_b32 s64, s%d, 10\ns_add_u32 s64, s64, %d\nv_lshrrev_b32 v1, 3, v%d\nv_lshl_add_u32 v1, v1, 7, s64\nv_and_b32 v2, 7, v%d\nv_lshl_add_u32 v1, v2, 2, v1",
          sRG, r.st, vJ, vJ)
        for mt in range(4):
            e("ds_read2_b32 v[%d:%d], v1 offset0:%d offset1:%d\nds_read_b32 v%d, v1 offset:%d",
              PAR + 4 * mt, PAR + 4 * mt + 1, mt * 64, mt * 64 + 8, PAR + 4 * mt + 2, mt * 256 + 64)
        e("s_mul_i32 s64, s%d, 384\ns_add_u32 s64, s64, %d\nv_lshl_add_u32 v2, v%d, 4, s64", sCG, r.cs, vG)
        for jj in range(6):
            e("ds_read_b128 %s, v2 offset:%d", vr(CSr + 4 * jj, 4), jj * 64)
        e("s_lshl_b32 s64, s%d, 3\ns_lshl_b32 s65, s%d, 2\ns_add_u32 s64, s64, s65\ns_mul_i32 s66, s64, %d", sRB, sRG, RT_STRIDE)
        e("s_mul_i32 s64, s%d, 6\ns_mul_i32 s65, s%d, 3\ns_add_u32 s64, s64, s65\ns_lshl_b32 s64, s64, 10\ns_add_u32 s66, s66, s64", sGRP, sCG)
        e("v_lshlrev_b32 v3, 4, v0\ns_waitcnt lgkmcnt(0)")
        for mt in range(4):
            e("v_sub_f32 v%d, 0, v%d\nv_mul_f32 v%d, 0x%x, v%d", PAR + 4 * mt, PAR + 4 * mt, PAR + 4 * mt + 1, f2u(-LOG2E), PAR + 4 * mt + 1)
        k = 0
        for mt in range(4):
            p = vr(PAR + 4 * mt, 2)
            sg = vr(PAR + 4 * mt + 2, 2)
            for j in range(3):
                t = T + 8 * (k % 2)
                o = T + 16 + 4 * (k % 4)
                k += 1
                prs = [(acc(2 * j + h, mt) + 2 * q, CSr + 4 * (2 * j + h) + 2 * q, t + 4 * h + 2 * q) for h in range(2) for q in range(2)]
                for a, c, w in prs:
                    e("v_pk_fma_f32 %s, %s, %s, %s op_sel_hi:[1,0,1]", vr(a, 2), vr(c, 2), p, vr(a, 2))
                for a, c, w in prs:
                    e("v_pk_mul_f32 %s, %s, %s op_sel:[0,1] op_sel_hi:[1,1]", vr(w, 2), vr(a, 2), p)
                for i in range(8):
                    e("v_exp_f32 v%d, v%d", t + i, t + i)
                for a, c, w in prs:
                    e("v_pk_fma_f32 %s, %s, %s, %s op_sel_hi:[1,0,0]", vr(w, 2), vr(w, 2), sg, sg)
                for i in range(8):
                    e("v_rcp_f32 v%d, v%d", t + i, t + i)
                for a, c, w in prs:
                    e("v_pk_mul_f32 %s, %s, %s", vr(w, 2), vr(w, 2), vr(a, 2))
                for i in range(4):
                    e("v_cvt_pk_bf16_f32 v%d, v%d, v%d", o + i, t + 2 * i, t + 2 * i + 1)
                e("buffer_store_dwordx4 %s, v3, s[%d:%d], s66 offen offset:%d sc1", vr(o, 4), WS, WS + 3, j * 1024)
            if mt < 3:
                e("s_add_u32 s66, s66, %d", RT_STRIDE)
        self.stamp(4, "Est")
        e("s_waitcnt vmcnt(0)")
        self.stamp(5, "Eend")
        e("s_barrier\ns_barrier")

    def phi(self, prs, eps_pair, t):
        e = self.e
        for i, (u, d) in enumerate(prs):
            e("v_pk_mul_f32 %s, %s, s[78:79]", vr(t + 2 * i, 2), vr(u, 2))
        for i in range(2 * len(prs)):
            e("v_exp_f32_e64 v%d, v%d clamp", t + i, t + i)
        for i, (u, d) in enumerate(prs):
            e("v_max_f32 v%d, s80, v%d\nv_max_f32 v%d, s80, v%d", t + 8 + 2 * i, u, t + 9 + 2 * i, u + 1)
        for i, (u, d) in enumerate(prs):
            e("v_pk_add_f32 %s, %s, %s", vr(t + 2 * i, 2), vr(t + 2 * i, 2), vr(t + 8 + 2 * i, 2))
        for i, (u, d) in enumerate(prs):
            e("v_cvt_pk_bf16_f32 v%d, v%d, v%d", d, t + 2 * i, t + 2 * i + 1)

    def epilogue_q(self, acc, sRG, sCG, vG, vJ):
        e = self.e
        r = Q
        PAR, CSK, CSV, CSX, T, XB, P = 32, 64, 66, 68, 70, 92, 100
        e("s_mov_b32 s78, 0x%x\ns_mov_b32 s79, 0x%x\ns_mov_b32 s80, 0x%x\ns_mov_b32 s81, 0x%x", f2u(LOG2E), f2u(LOG2E), f2u(1e-6), f2u(1e-6))
        e("s_lshl_b32 s64, s%d, 10\ns_add_u32 s64, s64, %d\nv_lshrrev_b32 v1, 1, v%d\nv_lshl_add_u32 v1, v1, 7, s64\nv_and_b32 v2, 1, v%d\nv_lshl_add_u32 v1, v2, 4, v1",
          sRG, r.st, vG, vG)
        for mt in range(4):
            e("ds_read_b128 %s, v1 offset:%d\nds_read_b128 %s, v1 offset:%d", vr(PAR + 8 * mt, 4), mt * 256, vr(PAR + 8 * mt + 4, 4), mt * 256 + 32)
        e("s_mul_i32 s64, s%d, 160\ns_add_u32 s64, s64, %d\nv_lshl_add_u32 v2, v%d, 2, s64", sCG, r.cs, vJ)
        e("ds_read2_b32 v[%d:%d], v2 offset0:80 offset1:100\nds_read2_b32 v[%d:%d], v2 offset0:160 offset1:180", CSK, CSK + 1, CSV, CSV + 1)
        e("v_lshrrev_b32 v3, 3, v%d\nv_mul_u32_u24 v3, 320, v3\nv_bfe_u32 v4, v%d, 2, 1\nv_mul_u32_u24 v4, 80, v4\nv_add_u32 v3, v3, v4", vJ, vJ)
        e("v_and_b32 v4, 3, v%d\nv_lshl_add_u32 v3, v4, 2, v3\nv_add_u32 v3, s64, v3\nds_read_b32 v%d, v3 offset:384", vJ, CSX)
        e("v_cmp_gt_u32 s[82:83], 8, v%d\nv_mov_b32 v4, 0\nv_mov_b32 v5, s80\nv_cndmask_b32 v%d, v4, v5, s[82:83]", vJ, CSX + 1)
        e("v_mov_b32 v6, 0x3f803f80\ns_waitcnt lgkmcnt(0)")
        for mt in range(4):
            for q in range(2):
                m, s = vr(PAR + 8 * mt + 2 * q, 2), vr(PAR + 8 * mt + 4 + 2 * q, 2)
                e("v_pk_mul_f32 %s, %s, %s neg_lo:[1,0] neg_hi:[1,0]", m, m, s)

        def norm(ct, mt, cs, hi, eps):
            sel = "op_sel:[0,%d%s] op_sel_hi:[1,%d%s]"
            for q in range(2):
                rm, t = vr(PAR + 8 * mt + 2 * q, 2), vr(T + 16 + 2 * q, 2)
                if eps == "s":
                    e("v_pk_fma_f32 %s, %s, %s, s[80:81] " + sel % (hi, ",0", hi, ",1"), t, rm, vr(cs, 2))
                elif eps == "v":
                    e("v_pk_fma_f32 %s, %s, %s, %s " + sel % (0, ",1", 0, ",1"), t, rm, vr(cs, 2), vr(cs, 2))
                else:
                    e("v_pk_mul_f32 %s, %s, %s " + sel % (hi, "", hi, ""), t, rm, vr(cs, 2))
            for q in range(2):
                a = vr(acc(ct, mt) + 2 * q, 2)
                e("v_pk_fma_f32 %s, %s, %s, %s", a, a, vr(PAR + 8 * mt + 4 + 2 * q, 2), vr(T + 16 + 2 * q, 2))

        for m in range(2):
            for h in range(2):
                mt = 2 * m + h
                for ct, hi in ((6, 0), (7, 1)):
                    norm(ct, mt, CSV, hi, None)
                    for q in range(2):
                        e("v_cvt_pk_bf16_f32 v%d, v%d, v%d", acc(ct, 2 * m) + 2 * h + q, acc(ct, mt) + 2 * q, acc(ct, mt) + 2 * q + 1)
                norm(3, mt, CSK, 0, "s")
                norm(4, mt, CSK, 1, "s")
                self.phi([(acc(ct, mt) + 2 * q, acc(ct, 2 * m) + 2 * h + q) for ct in (3, 4) for q in range(2)], None, T)
                norm(5, mt, CSX, 0, "v")
                for q in range(2):
                    e("v_cvt_pk_bf16_f32 v%d, v%d, v%d", T + 18 + q, acc(5, mt) + 2 * q, acc(5, mt) + 2 * q + 1)
                for q in range(2):
                    e("v_cndmask_b32 v%d, v%d, v6, s[82:83]", XB + 4 * m + 2 * h + q, T + 18 + q)
                self.phi([(acc(5, mt) + 2 * q, acc(5, 2 * m) + 2 * h + q) for q in range(2)], None, T)
            KA, KB, XA, VA, VB = (vr(acc(ct, 2 * m), 4) for ct in (3, 4, 5, 6, 7))
            xb = vr(XB + 4 * m, 4)
            for i, (a, b) in enumerate(((KA, VA), (KA, xb), (XA, VA), (KB, VB), (KB, xb), (XA, VB), (XA, xb))):
                d = vr(P + 4 * i, 4)
                e("v_mfma_f32_16x16x32_bf16 %s, %s, %s, %s", d, a, b, d if m else "0")
        e("s_mul_i32 s64, s%d, 6720\ns_mul_i32 s65, s%d, 3360\ns_add_u32 s64, s64, s65\ns_add_u32 s64, s64, %d", sRG, sCG, r.scat)
        e("v_mul_u32_u24 v1, 80, v%d\nv_add_u32 v1, s64, v1\nv_lshl_add_u32 v2, v%d, 4, v1", vJ, vG)
        e("v_and_b32 v3, 3, v%d\nv_mul_u32_u24 v3, 80, v3\nv_add_u32 v3, 1280, v3\nv_mov_b32 v4, 1600\nv_cmp_eq_u32 vcc, 0, v%d\nv_cndmask_b32 v3, v3, v4, vcc", vJ, vJ)
        e("v_add_u32 v3, s64, v3\nv_lshl_add_u32 v4, v%d, 4, v3\nv_mul_u32_u24 v5, 1680, v%d\nv_add_u32 v1, v1, v5\nv_add_u32 v3, v3, v5", vG, vG)

        def mask(fn):
            m = sum(1 << l for l in range(64) if fn(l >> 4, l & 15))
            e("s_mov_b32 exec_lo, 0x%x\ns_mov_b32 exec_hi, 0x%x", m & 0xffffffff, m >> 32)
        ina = lambda n: n == 0 or 8 <= n < 12
        inb = lambda n: n == 0 or 12 <= n
        e("ds_write_b128 v2, %s\nds_write_b128 v2, %s offset:1680", vr(P, 4), vr(P + 12, 4))
        mask(lambda g, n: ina(n))
        e("ds_write_b128 v4, %s", vr(P + 4, 4))
        mask(lambda g, n: inb(n))
        e("ds_write_b128 v4, %s offset:1680", vr(P + 16, 4))
        mask(lambda g, n: g == 0)
        e("ds_write_b128 v1, %s offset:64", vr(P + 8, 4))
        mask(lambda g, n: g == 1)
        e("ds_write_b128 v1, %s offset:64", vr(P + 20, 4))
        mask(lambda g, n: (g == 0 and ina(n)) or (g == 1 and inb(n)))
        e("ds_write_b128 v3, %s offset:64", vr(P + 24, 4))
        e("s_mov_b64 exec, -1")
        e("s_lshl_b32 s64, s%d, 10\ns_add_u32 s64, s64, %d\nv_lshrrev_b32 v1, 3, v%d\nv_lshl_add_u32 v1, v1, 7, s64\nv_and_b32 v2, 7, v%d\nv_lshl_add_u32 v1, v2, 2, v1",
          sRG, r.st, vJ, vJ)
        for mt in range(4):
            e("ds_read2_b32 v[%d:%d], v1 offset0:%d offset1:%d", PAR + 2 * mt, PAR + 2 * mt + 1, mt * 64, mt * 64 + 8)
        CQ = 40
        e("s_mul_i32 s64, s%d, 160\ns_add_u32 s64, s64, %d\nv_lshl_add_u32 v2, v%d, 4, s64", sCG, r.cs, vG)
        e("ds_read_b128 %s, v2\nds_read_b128 %s, v2 offset:80", vr(CQ, 4), vr(CQ + 4, 4))
        e("v_and_b32 v2, 1, v%d\nv_mul_u32_u24 v2, 80, v2\nv_add_u32 v2, s64, v2\nds_read_b128 %s, v2 offset:64", vG, vr(CQ + 8, 4))
        e("s_waitcnt lgkmcnt(0)\ns_barrier")
        self.stamp(4, "Est")
        for mt in range(4):
            e("v_mul_f32_e64 v%d, -v%d, v%d", PAR + 2 * mt, PAR + 2 * mt, PAR + 2 * mt + 1)
        dst = {0: 0, 2: 2, 1: 4}
        for mt in range(4):
            p = vr(PAR + 2 * mt, 2)
            for grp in ((0, 2), (1,)):
                for ct in grp:
                    for q in range(2):
                        e("v_pk_fma_f32 %s, %s, %s, s[80:81] op_sel_hi:[1,0,1]", vr(T + 16 + 2 * q, 2), vr(CQ + 4 * ct + 2 * q, 2), p)
                    for q in range(2):
                        a = vr(acc(ct, mt) + 2 * q, 2)
                        e("v_pk_fma_f32 %s, %s, %s, %s op_sel:[0,1,0] op_sel_hi:[1,1,1]", a, a, p, vr(T + 16 + 2 * q, 2))
                self.phi([(acc(ct, mt) + 2 * q, 8 + 6 * mt + dst[ct] + q) for ct in grp for q in range(2)], None, T)
        self.stamp(5, "Eend")

    def ostage(self, sRG, sCG):
        e = self.e
        AO, D, T = 160, 184, 232
        vG, vJ = T, T + 1
        e("v_lshrrev_b32 v%d, 4, v0\nv_and_b32 v%d, 15, v0", vG, vJ)
        e("s_mul_i32 s64, s%d, 1680\ns_add_u32 s64, s64, %d", sCG, Q.kvsum)
        e("v_mul_u32_u24 v%d, 40, v%d\nv_add_u32 v%d, s64, v%d", T + 2, vJ, T + 2, T + 2)
        e("v_and_b32 v%d, 3, v%d\nv_mul_u32_u24 v%d, 40, v%d\nv_add_u32 v%d, s64, v%d\nv_add_u32 v%d, 640, v%d", T + 3, vJ, T + 3, T + 3, T + 3, T + 3, T + 3, T + 3)
        e("v_mov_b32 v%d, s64\nv_add_u32 v%d, 800, v%d", T + 4, T + 4, T + 4)
        for k in range(3):
            e("v_lshl_add_u32 v%d, v%d, 3, v%d", T + 5 + k, vG, T + 2 + k)
        for h in range(2):
            for k in range(3):
                lo = AO + 12 * h + 4 * k + (2 if h else 0)
                hi = AO + 12 * h + 4 * k + (0 if h else 2)
                e("v_mov_b32 v%d, 0\nv_mov_b32 v%d, 0", hi, hi + 1)
                e("ds_read_b64 %s, v%d offset:%d", vr(lo, 2), T + 5 + k, 840 * h)
        for h in range(2):
            e("s_mov_b32 exec_lo, 0x%x\ns_mov_b32 exec_hi, 0", 0xffff << (16 * h))
            for k in range(3):
                hi = AO + 12 * h + 4 * k + (0 if h else 2)
                e("ds_read_b64 %s, v%d offset:%d", vr(hi, 2), T + 2 + k, 840 * h + 32)
        e("s_mov_b64 exec, -1")
        e("s_lshl_b32 s64, s%d, 3\ns_lshl_b32 s65, s%d, 2\ns_add_u32 s64, s64, s65\ns_mul_i32 s66, s64, %d", sRB, sRG, RT_STRIDE)
        e("s_lshl_b32 s64, s%d, 1\ns_add_u32 s64, s64, s%d\ns_lshl_b32 s65, s64, 10\ns_add_u32 s67, s66, s65\ns_add_u32 s67, s67, %d", sGRP, sCG, 48 * 1024)
        e("s_lshr_b32 s65, s64, 2\ns_lshl_b32 s65, s65, 10\ns_and_b32 s64, s64, 3\ns_lshl_b32 s64, s64, 8\ns_add_u32 s66, s66, s65\ns_add_u32 s66, s66, s64\ns_add_u32 s66, s66, %d", 64 * 1024)
        e("v_lshlrev_b32 v%d, 4, v0\ns_waitcnt lgkmcnt(0)", T + 8)
        for half in range(2):
            for i in range(2):
                mt = 2 * half + i
                for h in range(2):
                    for k in range(3):
                        e("v_mfma_f32_16x16x32_bf16 %s, %s, %s, 0", vr(D + 24 * i + 12 * h + 4 * k, 4), vr(AO + 12 * h + 4 * k, 4), vr(8 + 6 * mt + 2 * h, 4))
            for i in range(2):
                d = D + 24 * i
                o = T + 10 + 0
                for h in range(2):
                    e("v_add_f32 v%d, 0x%x, v%d", d + 12 * h + 8, f2u(1e-6), d + 12 * h + 8)
                for h in range(2):
                    e("v_rcp_f32 v%d, v%d", d + 12 * h + 8, d + 12 * h + 8)
                for h in range(2):
                    for q in range(4):
                        a = vr(d + 12 * h + 2 * q, 2)
                        e("v_pk_mul_f32 %s, %s, %s op_sel_hi:[1,0]", a, a, vr(d + 12 * h + 8, 2))
                o = T + 12 + 0 if i == 0 else AO - 8
                o2 = o + 4
                for h in range(2):
                    for q in range(2):
                        e("v_cvt_pk_bf16_f32 v%d, v%d, v%d", o + 2 * h + q, d + 12 * h + 2 * q, d + 12 * h + 2 * q + 1)
                        e("v_cvt_pk_bf16_f32 v%d, v%d, v%d", o2 + 2 * h + q, d + 12 * h + 4 + 2 * q, d + 12 * h + 5 + 2 * q)
                e("buffer_store_dwordx4 %s, v%d, s[%d:%d], s67 offen sc1", vr(o, 4), T + 8, WS, WS + 3)
                e("s_mov_b64 exec, 0xffff")
                e("buffer_store_dwordx4 %s, v%d, s[%d:%d], s66 offen sc1", vr(o2, 4), T + 8, WS, WS + 3)
                e("s_mov_b64 exec, -1\ns_add_u32 s66, s66, %d\ns_add_u32 s67, s67, %d", RT_STRIDE, RT_STRIDE)

    def phase2(self, r, sRG, sCG, vG, vJ):
        e = self.e
        sN, sAI, sBI, sDA, sDB = 77, 75, 76, 78, 79
        rw = r.rt // 2
        FR, ACC = 32, 128
        per = 4 * rw + 8
        e("v_lshrrev_b32 v152, 4, v0\nv_and_b32 v153, 15, v0")
        vG, vJ = 152, 153
        e("s_mul_i32 s64, s%d, %d\nv_lshl_add_u32 v2, v0, 4, s64", sRG, rw * 1024)
        e("v_lshrrev_b32 v1, 2, v0\nv_lshrrev_b32 v3, 3, v0\nv_and_b32 v3, 3, v3\ns_lshl_b32 s64, s%d, 1\nv_xor_b32 v3, s64, v3", sCG)
        e("v_lshlrev_b32 v3, 5, v3\nv_lshl_add_u32 v3, v1, 7, v3\nv_and_b32 v1, 3, v0\nv_lshl_add_u32 v3, v1, 3, v3")
        e("v_add_u32 v3, %d, v3\nv_xor_b32 v4, 32, v3", r.bbase + r.bidx(0) * 16384)
        e("v_bfe_u32 v1, v%d, 1, 2\nv_xor_b32 v1, s64, v1\nv_lshlrev_b32 v1, 5, v1\nv_lshl_add_u32 v1, v%d, 7, v1\nv_lshl_add_u32 v1, v%d, 3, v1", vJ, vJ, vG)
        e("s_mul_i32 s64, s%d, %d\ns_add_u32 s64, s64, %d\nv_add_u32 v5, s64, v1\nv_xor_b32 v6, 32, v5", sRG, rw * 2048, r.xo)
        self.swz128(7, 1, 1280)
        for k in range(rw * 8):
            e("v_mov_b32 v%d, 0", ACC + k)
        e("s_mov_b32 s%d, 0\ns_mov_b32 s%d, 0\ns_mov_b32 s%d, 0", sN, sAI, sBI)

        def reads(s):
            f = FR + per * s
            out = ["ds_read_b128 %s, v2 offset:%d" % (vr(f + 4 * k, 4), (s * r.rt + k) * 1024) for k in range(rw)]
            for u in range(2):
                for rd in range(2):
                    out.append("ds_read_b64_tr_b16 %s, v%d offset:%d" % (vr(f + 4 * rw + 4 * u + 2 * rd, 2), 3 + u, s * 4096 + rd * 2048))
            return out

        def mfmas(s):
            f = FR + per * s
            out = []
            for k in range(rw):
                for u in range(2):
                    d = vr(ACC + 8 * k + 4 * u, 4)
                    out.append("v_mfma_f32_16x16x32_bf16 %s, %s, %s, %s" % (d, vr(f + 4 * rw + 4 * u, 4), vr(f + 4 * k, 4), d))
            return out

        nr = rw + 4
        loop, back = "L_p2_" + r.name, "L_p2b_" + r.name
        e.label(loop)
        e("s_barrier")
        for l in reads(0) + reads(1):
            e(l)
        e("s_mov_b32 s%d, %d\ns_add_u32 s%d, s%d, 1\ns_cmp_eq_u32 s%d, 3\ns_cselect_b32 s%d, %d, s%d\ns_cselect_b32 s%d, 0, s%d",
          sDA, r.aslot, sAI, sAI, sAI, sDA, -2 * r.aslot & 0xffffffff, sDA, sAI, sAI)
        step = 16384 if r is F else -16384
        e("s_mov_b32 s%d, %d\ns_add_u32 s%d, s%d, 1\ns_cmp_eq_u32 s%d, %d\ns_cselect_b32 s%d, %d, s%d\ns_cselect_b32 s%d, 0, s%d",
          sDB, step & 0xffffffff, sBI, sBI, sBI, r.nb, sDB, -(r.nb - 1) * step & 0xffffffff, sDB, sBI, sBI)
        e("s_waitcnt lgkmcnt(%d)", nr)
        for l in interleave(mfmas(0), reads(2)):
            e(l)
        e("s_waitcnt lgkmcnt(%d)", nr)
        for l in interleave(mfmas(1), reads(3)):
            e(l)
        e("s_waitcnt lgkmcnt(%d)", nr)
        for l in interleave(mfmas(2), ["v_add_u32 v2, s%d, v2" % sDA, "v_add_u32 v3, s%d, v3" % sDB, "v_add_u32 v4, s%d, v4" % sDB]):
            e(l)
        e("s_waitcnt lgkmcnt(0)")
        for l in mfmas(3):
            e(l)
        if r is Q:
            e("s_cmp_eq_u32 s%d, %d\ns_cbranch_scc1 L_ostage\ns_cmp_eq_u32 s%d, %d\ns_cbranch_scc1 L_oflag", sN, O_STAGE, sN, O_FLAG - 1)
        e.label(back)
        e("s_add_u32 s%d, s%d, 1\ns_cmp_lg_u32 s%d, 17\ns_cbranch_scc1 %s", sN, sN, sN, loop)
        self.stamp(12, "pend")
        for k in range(rw):
            for u in range(2):
                e("ds_read_b64 %s, v%d offset:%d", vr(FR + 4 * k + 2 * u, 2), 5 + u, k * 2048)
        e("s_waitcnt lgkmcnt(0)")
        for k in range(rw):
            for u in range(2):
                x, a, t = FR + 4 * k + 2 * u, ACC + 8 * k + 4 * u, 64
                e("v_lshlrev_b32 v%d, 16, v%d\nv_and_b32 v%d, 0xffff0000, v%d\nv_lshlrev_b32 v%d, 16, v%d\nv_and_b32 v%d, 0xffff0000, v%d",
                  t, x, t + 1, x, t + 2, x + 1, t + 3, x + 1)
                e("v_pk_add_f32 %s, %s, %s\nv_pk_add_f32 %s, %s, %s", vr(a, 2), vr(a, 2), vr(t, 2), vr(a + 2, 2), vr(a + 2, 2), vr(t + 2, 2))
                e("v_cvt_pk_bf16_f32 v%d, v%d, v%d\nv_cvt_pk_bf16_f32 v%d, v%d, v%d", x, a, a + 1, x + 1, a + 2, a + 3)
                e("ds_write_b64 v%d, %s offset:%d", 5 + u, vr(x, 2), k * 2048)
        e("s_waitcnt lgkmcnt(0)")
        e.label("L_final_" + r.name)
        e("s_barrier")
        e("s_lshl_b32 s64, s%d, 10\ns_add_u32 s64, s64, %d\nv_lshl_add_u32 v1, v0, 4, s64\nds_read_b128 v[8:11], v1", sWAVE, r.xo)
        if r is F:
            e("ds_read_b128 v[12:15], v1 offset:8192")
        e("s_mul_i32 s66, s%d, 20480\ns_lshl_b32 s65, s%d, 7\ns_add_u32 s66, s66, s65\ns_mul_i32 s65, s%d, 10240\ns_add_u32 s66, s66, s65",
          sRT0, sCBG, sWAVE)
        e("s_waitcnt lgkmcnt(0)")
        e("buffer_store_dwordx4 v[8:11], v7, s[%d:%d], s66 offen sc1", OUT, OUT + 3)
        if r is F:
            e("s_cmp_ge_u32 s%d, 4\ns_cbranch_scc1 L_done_F\ns_add_u32 s66, s66, 81920", sWAVE)
            e("buffer_store_dwordx4 v[12:15], v7, s[%d:%d], s66 offen sc1", OUT, OUT + 3)
            e.label("L_done_F")
        self.who = ("comp", "load")
        self.stamp(13, "end")
        self.who = ("comp",)
        self.stamp_flush()
        e("s_endpgm")
        if r is Q:
            e.label("L_ostage")
            self.stamp(8, "o0")
            self.ostage(sRG, sCG)
            self.stamp(9, "o1")
            e("s_branch " + back)
            e.label("L_oflag")
            e("s_waitcnt vmcnt(0)")
            self.stamp(10, "odrain")
            e("s_branch " + back)

    def build(self):
        e = self.e
        self.entry()
        e("s_cmp_lt_u32 s%d, 4\ns_cbranch_scc1 L_compute_F", sWAVE)
        self.loader(F)
        self.compute(F)
        e.label("L_role_Q")
        e("s_cmp_lt_u32 s%d, 4\ns_cbranch_scc1 L_compute_Q", sWAVE)
        self.loader(Q)
        self.compute(Q)
        e.label("L_end")
        e("s_endpgm")
        body = fix_hazards(e.L)
        head = open("parallel_sum__linear_attn_block__dense_activation_silu__prompt.s.ref").read()
        head = head.split("; Override launch geometry")[0]
        out = [head.rstrip(),
               "; One persistent launch: 256 workgroups of 8 waves (4 matrix waves, 4 loader waves).",
               "; @launch grid=(256,1,1) block=(512,1,1) lds=163840",
               '.amdgcn_target "amdgcn-amd-amdhsa--gfx950"', ".text", ".globl " + KNAME, ".p2align 8",
               ".type %s,@function" % KNAME, KNAME + ":"]
        out += [l if l.endswith(":") else "    " + l for l in body]
        out += ['.section .rodata,"a"', ".p2align 6", ".amdhsa_kernel " + KNAME,
                "  .amdhsa_next_free_vgpr 256", "  .amdhsa_next_free_sgpr 102", "  .amdhsa_accum_offset 256",
                "  .amdhsa_group_segment_fixed_size 0", "  .amdhsa_kernarg_size 72", "  .amdhsa_user_sgpr_count 2",
                "  .amdhsa_user_sgpr_kernarg_segment_ptr 1", "  .amdhsa_system_sgpr_workgroup_id_x 1", ".end_amdhsa_kernel"]
        return "\n".join(out) + "\n"


if __name__ == "__main__":
    path = sys.argv[1]
    open(path, "w").write(Gen(stamps="cyc" if "--cyc" in sys.argv else "--stamps" in sys.argv,
                               dbgwg=int(sys.argv[sys.argv.index("--dbg") + 1]) if "--dbg" in sys.argv else None,
                               opt=[a[2:] for a in sys.argv if a.startswith("-O")]).build())
```

```python
import sys
from asmlib import Asm, VmTrack, fix_hazards, interleave, f2u, vr

KNAME = "parallel_sum__linear_attn_block__dense_activation_silu__prompt_kernel"

RT_STRIDE = 68 * 1024
WS_CSUM = 0x880000
CSUM_G = 10240
WS_KVP = 0x8A8000
KVP_RB = 3456
WS_FLAGS = 0x918000
WS_STATS = 0x920000
WS_STAMP = 0xA00000
WS_SIZE = 0xB00000
OOB = 0x40000000
SPIN_MAX = 1 << 16
C_H, C_O, C_ST, C_S1, C_LINES = 0, 16, 32, 48, 64

X, W1, W2, WO, WS, OUT, DBG = 8, 12, 16, 20, 24, 28, 32
PX, PQKV, PWO, PW1, PW2, POUT, PDBG, PWS = 36, 38, 40, 44, 46, 48, 50, 52
FB, sP0, sP1 = 42, 57, 101
sWAVE, sRB, sGRP, sP, sB_, sCBG, sRT0, sKT = 54, 55, 56, 58, 59, 60, 61, 62
sW, sI, sT3 = 63, 3, 67
sSTAMP = 84
LOG2E = 1.4426950408889634


class Role:
    pass


F = Role()
F.name, F.idx, F.slot, F.ncol, F.rt = "F", 0, 40960, 192, 6
FO, FCS = 16384, 3072
Q = Role()
Q.name, Q.idx, Q.slot, Q.ncol, Q.rt = "Q", 1, 48384, 240, 4
KO, KCS, QO, QCS = 16384, 2592, 37120, 1408
SCR = 155648
ST, CS, MB, KVSUM = SCR, SCR + 2048, SCR + 3072, SCR + 3328
SCAT = 32768
for r_ in (F, Q):
    r_.aslot = r_.rt * 4096
    r_.bbase, r_.nb = 3 * r_.aslot, (5 if r_.rt == 6 else 6)
    r_.xo = r_.bbase + (17 % r_.nb) * 16384
M_H, M_HCNT, M_OCNT, M_O, M_PAIR, M_GATE, M_S1 = MB, MB + 4, MB + 8, MB + 12, MB + 16, MB + 32, MB + 36


class Gen:
    def __init__(self, stamps=False, opt=()):
        self.e = Asm()
        self.opt = opt
        self.who = ("comp", "load")
        self.stamps = stamps
        self.nap = self.num("nap", 6)
        self.k0 = self.num("kv", 0)

    def num(self, key, default):
        return next((int(o[len(key):]) for o in self.opt if o.startswith(key) and o[len(key):].isdigit()), default)

    def srd(self, d, p, size):
        self.e("s_mov_b32 s%d, s%d\ns_mov_b32 s%d, s%d\ns_mov_b32 s%d, 0x%x\ns_mov_b32 s%d, 0x20000",
               d, p, d + 1, p + 1, d + 2, size, d + 3)

    def stamp(self, k, name):
        if self.stamps:
            for who in self.who:
                self.e.L.append("; stamp %s %d %s" % (who, k, name))
            self.e(("s_memtime" if self.stamps == "cyc" else "s_memrealtime") +
                   " s[68:69]\ns_waitcnt lgkmcnt(0)\ns_mov_b32 s%d, s68", sSTAMP + k)

    def stamp_flush(self):
        if not self.stamps:
            return
        e = self.e
        e("s_lshl_b32 s64, s2, 3\ns_add_u32 s64, s64, s%d\ns_lshl_b32 s64, s64, 6\ns_add_u32 s64, s64, 0x%x\nv_mov_b32 v1, 0", sWAVE, WS_STAMP)
        for k in range(16):
            e("v_writelane_b32 v1, s%d, %d", sSTAMP + k, k)
        e("v_lshlrev_b32 v2, 2, v0\ns_mov_b64 exec, 0xffff\nbuffer_store_dword v1, v2, s[%d:%d], s64 offen\ns_mov_b64 exec, -1", WS, WS + 3)

    def swz128(self, dst, tmp, stride):
        e = self.e
        e("v_lshrrev_b32 v%d, 4, v0\nv_lshlrev_b32 v%d, 1, v%d\nv_xor_b32 v%d, v%d, v0\nv_and_b32 v%d, 7, v%d",
          tmp, tmp, tmp, tmp, tmp, tmp, tmp)
        e("v_lshlrev_b32 v%d, 4, v%d\nv_lshrrev_b32 v%d, 3, v0\nv_mul_u32_u24 v%d, %d, v%d\nv_add_u32 v%d, v%d, v%d",
          tmp, tmp, dst, dst, stride, dst, dst, dst, tmp)

    def poll(self, what):
        for (base, sreg, off), d in zip(what, (sP0, sP1)):
            if sreg is None:
                self.e("s_load_dword s%d, s[%d:%d], 0x%x", d, base, base + 1, off)
            else:
                self.e("s_load_dword s%d, s[%d:%d], s%d offset:0x%x", d, base, base + 1, sreg, off)

    def lds_wait(self, addr, want, va=16, nap=1, cnt=sT3):
        e = self.e
        top, out = e.newlabel("lw"), e.newlabel("lw")
        if addr is not None:
            e("v_mov_b32 v%d, %d", va, addr)
        e("s_mov_b32 s%d, %d", cnt, 64 * SPIN_MAX)
        e.label(top)
        e("ds_read_b32 v%d, v%d\ns_sub_u32 s%d, s%d, 1\ns_cbranch_scc1 %s\ns_waitcnt lgkmcnt(0)\nv_cmp_eq_u32 vcc, %d, v%d",
          va + 1, va, cnt, cnt, out, want, va + 1)
        if nap:
            e("s_sleep %d", nap)
        e("s_cbranch_vccz %s", top)
        e.label(out)

    def check(self, what, want, box):
        e = self.e
        slow, again, ok, lead, tell, done = (e.newlabel("chk") for _ in range(6))
        e("s_waitcnt lgkmcnt(0)")
        if len(want) == 2:
            e("s_cmp_lt_u32 s%d, %d\ns_cbranch_scc1 %s", sP1, want[1], slow)
        e("s_cmp_ge_u32 s%d, %d\ns_cbranch_scc1 %s", sP0, want[0], tell)
        e.label(slow)
        e("s_cmp_eq_u32 s%d, 0\ns_cbranch_scc1 %s", sW, lead)
        self.lds_wait(box, 1)
        e("s_branch %s", ok)
        e.label(lead)
        e("s_mov_b32 s%d, %d", sT3, SPIN_MAX)
        for i, (base, sreg, off) in enumerate(what):
            if sreg is None:
                e("v_mov_b32 v%d, %d", 16 + i, off)
            else:
                e("s_add_u32 s64, s%d, 0x%x\nv_mov_b32 v%d, s64", sreg, WS_FLAGS + off, 16 + i)
        srd = DBG if what[0][1] is None else WS
        e("s_mov_b64 exec, 1")
        e.label(again)
        for i in range(len(what)):
            e("buffer_load_dword v%d, v%d, s[%d:%d], 0 offen sc1", 18 + i, 16 + i, srd, srd + 3)
        e("s_waitcnt vmcnt(0)\nv_cmp_le_u32 vcc, %d, v18", want[0])
        if len(want) == 2:
            e("v_cmp_le_u32 s[64:65], %d, v19\ns_and_b64 vcc, vcc, s[64:65]", want[1])
        e("s_cbranch_vccnz %s\ns_sleep %d\ns_sub_u32 s%d, s%d, 1\ns_cbranch_scc0 %s", done, self.nap, sT3, sT3, again)
        e.label(done)
        e("s_mov_b64 exec, -1")
        e.label(tell)
        e("v_mov_b32 v16, %d\nv_mov_b32 v17, 1\nds_write_b32 v16, v17", box)
        e.label(ok)

    def entry(self):
        e = self.e
        e("s_cmp_ge_u32 s2, 256\ns_cbranch_scc1 L_end")
        e("s_load_dwordx16 s[36:51], s[0:1], 0\ns_load_dwordx2 s[52:53], s[0:1], 64")
        e("s_getpc_b64 s[4:5]")
        e.label("L_pc")
        e("s_mov_b32 s6, L_end-L_pc\ns_mov_b32 s7, 0x20000\ns_lshr_b32 s3, s2, 3\ns_mul_i32 s3, s3, 1408")
        e("v_lshlrev_b32 v1, 7, v0\nv_cmp_gt_u32 vcc, 22, v0\ns_and_saveexec_b64 s[64:65], vcc\ns_cbranch_execz L_nopf")
        e("buffer_load_dword v90, v1, s[4:7], s3 offen")
        e.label("L_nopf")
        e("s_mov_b64 exec, s[64:65]")
        e("v_lshrrev_b32 v1, 6, v0\nv_and_b32 v0, 63, v0\nv_readfirstlane_b32 s%d, v1", sWAVE)
        e("s_lshr_b32 s%d, s2, 3\ns_bfe_u32 s%d, s2, 0x20001\ns_and_b32 s%d, s2, 1", sI, sP, sB_)
        e("s_and_b32 s64, s%d, 7\ns_bfe_u32 s65, s2, 0x10002\ns_lshl_b32 s%d, s65, 3\ns_add_u32 s%d, s%d, s64", sI, sRB, sRB, sRB)
        e("s_lshr_b32 s66, s%d, 4\ns_and_b32 s65, s2, 3\ns_lshl_b32 s%d, s65, 1\ns_add_u32 s%d, s%d, s66", sI, sGRP, sGRP, sGRP)
        e("s_lshr_b32 s67, s%d, 3\ns_mul_i32 s67, s67, 3\ns_add_u32 s%d, s%d, s67\ns_add_u32 s%d, s%d, s65", sI, sKT, sRB, sKT, sKT)
        for _ in range(2):
            e("s_sub_u32 s67, s%d, 10\ns_cmp_ge_u32 s%d, 10\ns_cselect_b32 s%d, s67, s%d", sKT, sKT, sKT, sKT)
        e("s_and_b32 s%d, s%d, 3\ns_lshl_b32 s66, s66, 3\ns_add_u32 s70, s66, s64", sW, sWAVE)
        self.stamp(0, "entry")
        e("s_cmp_lt_u32 s%d, 4\ns_cbranch_scc1 L_matrix\ns_setprio 3", sWAVE)
        e("s_and_b32 s64, s%d, 1\ns_lshl_b32 s64, s64, 2", sW)
        e("v_lshrrev_b32 v1, 4, v0\nv_add_u32 v1, s64, v1\nv_xor_b32 v1, v1, v0\nv_and_b32 v1, 7, v1\nv_lshlrev_b32 v1, 4, v1")
        e("s_lshl_b32 s65, s%d, 3\nv_lshrrev_b32 v7, 3, v0\nv_add_u32 v7, s65, v7\nv_mul_u32_u24 v2, 1280, v7\nv_add_u32 v2, v2, v1", sW)
        e("s_lshl_b32 s75, s%d, 10\ns_mul_i32 s73, s%d, 163840\ns_lshl_b32 s65, s%d, 7\ns_add_u32 s73, s73, s65\ns_waitcnt lgkmcnt(0)", sW, sRB, sKT)
        self.srd(X, PX, 2621440)
        for j in range(4):
            e("s_add_u32 m0, s75, %d\ns_add_u32 s65, s73, %d\nbuffer_load_dwordx4 v2, s[%d:%d], s65 offen lds", 4096 * j, 40960 * j, X, X + 3)
        e("s_bitcmp1_b32 s%d, 3\ns_cbranch_scc1 L_loader_Q", sI)

    def phase2_ids(self, r):
        e = self.e
        if r.rt == 6:
            e("s_lshr_b32 s64, s70, 2\ns_and_b32 s65, s70, 3")
            e("s_sub_u32 s66, s70, 12\ns_lshr_b32 s67, s66, 1\ns_add_u32 s67, s67, 3\ns_and_b32 s66, s66, 1")
            e("s_cmp_ge_u32 s70, 12\ns_cselect_b32 s64, s67, s64\ns_cselect_b32 s65, s66, s65\ns_mul_i32 s65, s65, 6")
        else:
            e("s_lshr_b32 s64, s70, 1\ns_and_b32 s65, s70, 1\ns_add_u32 s65, s65, 6")
            e("s_sub_u32 s66, s70, 3\ns_sub_u32 s67, s70, 8\ns_cmp_ge_u32 s70, 11\ns_cselect_b32 s66, s67, s66\ns_cselect_b32 s67, 4, 3")
            e("s_cmp_ge_u32 s70, 6\ns_cselect_b32 s64, s67, s64\ns_cselect_b32 s65, s66, s65\ns_lshl_b32 s65, s65, 2")
        e("s_mul_i32 s%d, s%d, 5\ns_add_u32 s%d, s%d, s64", sCBG, sB_, sCBG, sCBG)
        e("s_lshl_b32 s%d, s%d, 5\ns_add_u32 s%d, s%d, s65", sRT0, sP, sRT0, sRT0)
        e("s_mul_i32 s66, s65, 3\ns_lshr_b32 s66, s66, 3\ns_mul_i32 s67, s%d, 5\ns_add_u32 s71, s66, s67", sCBG)
        e("s_mul_i32 s66, s71, 43\ns_lshr_b32 s66, s66, 9\ns_mul_i32 s66, s66, 12\ns_sub_u32 s71, s71, s66\ns_and_b32 s72, s71, 3")

    def loader(self, r):
        e = self.e
        vm = VmTrack(e)
        vA, vB, vB2, vBX, vL16, vT, vU, vH = 2, 3, 4, 5, 6, 7, 8, 9
        vMY, vW0, vW1, vCSA, vCSW, vKVA, vSS, vSC = 10, 11, 12, 13, 14, 15, 20, 22
        sA, sBo, sW1K, sWB, sTA, sTB, sAT, sBT, sKT0, sWH, sM = 73, 74, 75, 76, 77, 78, 79, 80, 81, 82, 100
        sORB, sOG, sOA, sOB = 36, 37, 38, 39
        KV = 128
        self.who = ("load",)
        e.label("L_loader_" + r.name)
        if r is F:
            e("v_bfe_u32 v1, v0, 4, 1\nv_lshlrev_b32 v1, 1, v1\nv_add_u32 v1, s64, v1\nv_xor_b32 v1, v1, v0\nv_and_b32 v1, 7, v1")
            e("v_lshlrev_b32 v1, 4, v1\nv_mul_u32_u24 v%d, 3072, v%d\nv_add_u32 v%d, v%d, v1\ns_mul_i32 s%d, s%d, 3072", vB, vT, vB, vB, sWB, sW)
            self.srd(W1, PW1, 640 * 1536 * 2)
        else:
            e("v_mul_u32_u24 v1, 26, v0\nv_lshrrev_b32 v1, 8, v1\nv_lshrrev_b32 v%d, 1, v1\nv_mul_u32_u24 v%d, 3520, v%d", vU, vU, vU)
            e("v_and_b32 v16, 1, v1\nv_mul_u32_u24 v16, 1120, v16\ns_mul_i32 s65, s%d, 7680\ns_add_u32 s65, s65, 1280", sW)
            e("v_lshl_add_u32 v%d, v0, 4, s65\nv_add3_u32 v%d, v%d, v%d, v16\ns_mul_i32 s%d, s%d, 640", vH, vH, vH, vU, sWH, sW)
            e("v_mul_u32_u24 v1, 3680, v1\ns_mul_i32 s65, s%d, 61440\nv_lshl_add_u32 v%d, v0, 4, s65\nv_add_u32 v%d, v%d, v1\ns_mul_i32 s%d, s%d, 2816",
              sW, vB, vB, vB, sWB, sW)
            self.srd(W1, PQKV, 640 * 1920 * 2)

        def dma(tag, m0, moff, so, soff, va, srd, fl=""):
            e("s_add_u32 m0, s%d, %d\ns_add_u32 s64, s%d, %d", m0, moff, so, soff)
            vm.issue(tag, "buffer_load_dwordx4 v%d, s[%d:%d], s64 offen%s lds", va, srd, srd + 3, fl)

        def tile_a(t):
            e("s_mul_i32 s%d, s%d, 163840\ns_lshl_b32 s64, s%d, 7\ns_add_u32 s%d, s%d, s64", sA, sRB, sKT, sA, sA)
            for j in range(4):
                dma("t%d" % t, sW1K, (t % 3) * r.slot + 4096 * j, sA, 40960 * j, vA, X)

        def tile_b(t):
            base, tag = (t % 3) * r.slot, "t%d" % t
            if r is Q:
                e("s_mul_i32 s%d, s%d, 160\ns_mul_i32 s64, s%d, 245760\ns_add_u32 s%d, s%d, s64\ns_mov_b32 exec_hi, 0xff", sBo, sGRP, sKT, sBo, sBo)
                for c in range(8):
                    dma(tag, sWH, base + KO + c * KCS, sBo, c * 30720, vH, W1)
                for cw in range(2):
                    for h in range(2):
                        dma(tag, sWB, base + QO + cw * QCS + h * 640, sBo, (8 * cw + 4 * h) * 3840, vB, W1)
                e("s_mov_b32 exec_hi, -1")
            else:
                e("s_mul_i32 s%d, s%d, 384\ns_mul_i32 s64, s%d, 196608\ns_add_u32 s%d, s%d, s64", sBo, sGRP, sKT, sBo, sBo)
                for cc in range(2):
                    for a in range(3):
                        dma(tag, sWB, base + FO + cc * 4 * FCS + a * 1024, sBo, cc * 98304 + 128 * a, vB, W1)
            e("s_add_u32 s%d, s%d, 1\ns_cmp_eq_u32 s%d, 10\ns_cselect_b32 s%d, 0, s%d", sKT, sKT, sKT, sKT, sKT)

        def tile(t):
            tile_a(t)
            tile_b(t)

        e("s_mov_b32 s%d, s%d", sKT0, sKT)
        vm.q += ["t0"] * 4
        tile_b(0)
        vm.q[-1] = "t0b"
        tile_a(1)
        e("s_setprio 0")
        self.stamp(1, "issued")
        self.srd(W2, PW2, 1536 * 640 * 2)
        self.srd(WO, PWO, 640 * 640 * 2)
        self.srd(WS, PWS, WS_SIZE)
        self.srd(OUT, POUT, 2621440)
        self.srd(DBG, PDBG, 256)
        self.phase2_ids(r)
        self.swz128(vB2, 1, 1280)
        e("v_lshrrev_b32 v1, 5, v0\nv_mul_u32_u24 v1, %d, v1\nv_add_u32 v%d, v%d, v1\nv_lshlrev_b32 v%d, 4, v0", 36 * 1280, vBX, vB2, vL16)
        e("s_add_u32 s%d, s%d, 0x%x\ns_addc_u32 s%d, s%d, 0", FB, PWS, WS_FLAGS, FB + 1, PWS + 1)
        e("s_lshl_b32 s%d, s%d, 7\ns_lshl_b32 s%d, s%d, 7", sORB, sRB, sOG, sGRP)
        e("s_lshr_b32 s64, s%d, 3\ns_lshl_b32 s%d, s64, 7\ns_add_u32 s64, s%d, %d\ns_lshr_b32 s64, s64, 3\ns_lshl_b32 s%d, s64, 7", sRT0, sOA, sRT0, r.rt - 1, sOB)
        e("s_mov_b32 s67, 0x%x\ns_cmp_eq_u32 s%d, 0\ns_cselect_b32 s67, 0x%x, s67\nv_mov_b32 v%d, 0x%x", OOB, sW, WS_FLAGS, vT, OOB)
        e("s_add_u32 s64, s67, s%d\ns_add_u32 s64, s64, %d\nv_mov_b32 v1, s64\nv_cmp_eq_u32 vcc, 0, v0\nv_cndmask_b32 v%d, v%d, v1, vcc",
          sOG, (C_S1 + 8 * r.idx) * 128, vMY, vT)
        if r is F:
            e("s_add_u32 s64, s67, s%d\ns_add_u32 s64, s64, %d\nv_mov_b32 v1, s64\nv_cmp_eq_u32 vcc, 1, v0\nv_cndmask_b32 v%d, v%d, v1, vcc", sORB, C_ST * 128, vMY, vMY)
            e("s_lshl_b32 s64, s%d, 4\ns_add_u32 s64, s64, s70\ns_mul_i32 s64, s64, 170\ns_mul_i32 s65, s%d, 43\nv_add_u32 v1, s65, v0\nv_add_u32 v%d, s64, v1", sP, sW, vW0)
            e("v_mul_u32_u24 v16, 52429, v%d\nv_lshrrev_b32 v16, 18, v16\nv_mul_u32_u24 v16, 640, v16\nv_lshl_add_u32 v16, v%d, 7, v16\ns_mul_i32 s64, s%d, 640", vW0, vW0, sB_)
            e("v_add_u32 v16, s64, v16\nv_cmp_gt_u32 vcc, 170, v1\nv_cndmask_b32 v16, v%d, v16, vcc\nv_cmp_gt_u32 vcc, 43, v0\nv_cndmask_b32 v%d, v%d, v16, vcc", vT, vW0, vT)
            e("v_subrev_u32 v%d, %d, v%d", vW1, 1536 * 1280, vW0)
        e("s_lshl_b32 s64, s%d, 6\nv_add_u32 v1, s64, v0", sW)
        if r is Q:
            e("v_lshlrev_b32 v%d, 4, v1\ns_mul_i32 s65, s%d, %d\ns_add_u32 s65, s65, 0x%x\nv_add_u32 v%d, s65, v%d", vKVA, sGRP, 16 * KVP_RB, WS_KVP, vKVA, vKVA)
            e("v_cmp_gt_u32 vcc, 210, v1\nv_cndmask_b32 v%d, v%d, v%d, vcc", vKVA, vT, vKVA)
        e("s_mul_i32 s%d, s%d, %d\ns_add_u32 s%d, s%d, 0x%x", sM, sGRP, CSUM_G, sM, sM, WS_CSUM + 8 * CSUM_G * r.idx)
        e("v_and_b32 v16, 0xe0, v1\nv_and_b32 v17, 7, v1\nv_lshl_add_u32 v16, v17, 2, v16\nv_bfe_u32 v17, v1, 3, 2\nv_add_u32 v16, v16, v17")
        e("v_lshl_add_u32 v16, v16, 2, s%d\nv_cmp_gt_u32 vcc, %d, v1\nv_cndmask_b32 v%d, v%d, v16, vcc", sM, r.ncol, vCSA, vT)
        e("v_lshlrev_b32 v1, 2, v1\nv_add_u32 v%d, %d, v1", vCSW, CS)
        e("v_mov_b32 v1, %d\nv_mov_b32 v16, 0\nv_mov_b32 v17, 0\nv_mov_b32 v18, 0\nv_mov_b32 v19, 0", MB)
        e("ds_write_b128 v1, v[16:19]\nds_write_b128 v1, v[16:19] offset:16\nds_write_b128 v1, v[16:19] offset:32")
        e("s_mov_b32 s%d, s71\ns_mov_b32 s%d, s71", sTA, sTB)

        def adv(s, n):
            if n < 11:
                e("s_add_u32 s%d, s%d, 1\ns_cmp_eq_u32 s%d, 12\ns_cselect_b32 s%d, 0, s%d", s, s, s, s, s)
            elif n == 11:
                e("s_mov_b32 s%d, s72", s)
            elif n < 15:
                e("s_add_u32 s%d, s%d, 1\ns_and_b32 s%d, s%d, 3", s, s, s, s)

        def step_of(n, dst, s):
            if n < 16:
                e("s_lshl_b32 s%d, s%d, 2\ns_add_u32 s%d, s%d, s%d", dst, s, dst, dst, sW)
            else:
                e("s_mov_b32 s%d, s%d", dst, sW)

        def btile(n):
            e("s_lshl_b32 s65, s%d, 12\ns_lshl_b32 s66, s%d, 7", sW, sCBG)
            step_of(n, sBT, sTB)
            mul, rows, srd, va = (40960, (0, 8, 16, 24), W2, vB2) if n < 12 else \
                (51200, (0, 8, 20, 28), WO, vB2) if n < 16 else (204800, (16, 96, 36, 116), WO, vBX)
            e("s_mul_i32 s%d, s%d, %d\ns_add_u32 s%d, s%d, s66", sBT, sBT, mul, sBT, sBT)
            for q in range(4):
                dma("B%d" % n, 65, r.bbase + (n % r.nb) * 16384 + q * 1024, sBT, rows[q] * 1280, va, srd)
            adv(sTB, n)

        def atile(n):
            e("s_mul_i32 s65, s%d, %d\ns_mul_i32 s66, s%d, %d", sW, r.rt * 1024, sRT0, RT_STRIDE)
            step_of(n, sAT, sTA)
            e("s_lshl_b32 s%d, s%d, 10\ns_add_u32 s%d, s%d, s66", sAT, sAT, sAT, sAT)
            first = 0 if n < 12 else 48 if n < 16 else 64
            for k in range(r.rt):
                dma("A%d" % n, 65, (n % 3) * r.aslot + k * 1024, sAT, k * RT_STRIDE + first * 1024, vL16, WS, " sc1")
            adv(sTA, n)

        def xotile():
            e("s_mul_i32 s66, s%d, 20480\ns_lshl_b32 s65, s%d, 7\ns_add_u32 s66, s66, s65\ns_mul_i32 s65, s%d, 10240\ns_add_u32 s66, s66, s65",
              sRT0, sCBG, sW)
            for j in range(r.rt // 2):
                dma("XO", sW1K, r.xo + j * 4096, 66, j * 40960, vB2, X)

        def colsum():
            done, go = e.newlabel("cs"), e.newlabel("cs")
            jobs = [("f", 0, 16, 0), ("f", 16, 8, 16)] if r is F else [("k", 0, 16, 0), ("k", 16, 4, 16), ("q", 0, 10, 20)]
            e("v_mov_b32 v%d, 0x%x\ns_cmp_ge_u32 s%d, 10\ns_cbranch_scc1 %s\ns_cmp_ge_u32 s%d, %d\ns_cbranch_scc1 %s", vSS, OOB, sRB, done, sW, len(jobs), done)
            e("v_and_b32 v1, 15, v0\nv_lshrrev_b32 v16, 4, v0\ns_lshl_b32 s64, s%d, 10\ns_add_u32 s64, s64, s%d", sKT0, sM)
            for w, (kind, p0, np_, gp0) in enumerate(jobs):
                nxt = e.newlabel("cs")
                if w < len(jobs) - 1:
                    e("s_cmp_lg_u32 s%d, %d\ns_cbranch_scc1 %s", sW, w, nxt)
                e("v_min_u32 v17, %d, v1\ns_add_u32 s64, s64, %d\ns_mov_b32 s65, %d", np_ - 1, gp0 * 32, (np_ + 3) // 4)
                if kind != "f":
                    ro, cs, rs = (KO, KCS, 320) if kind == "k" else (QO, QCS, 160)
                    e("v_mul_u32_u24 v18, %d, v16\nv_lshl_add_u32 v18, v17, 4, v18\nv_add_u32 v%d, %d, v18", rs, vSC, ro + 16 * p0)
                    offs = [(vSC, (q >> 1) * cs + (q & 1) * 4 * rs) for q in range(16)]
                else:
                    e("v_lshrrev_b32 v18, 3, v17\nv_lshlrev_b32 v18, 10, v18\nv_lshl_add_u32 v18, v16, 7, v18\nv_and_b32 v19, 2, v16\nv_xor_b32 v19, v19, v17")
                    e("v_and_b32 v19, 7, v19\nv_lshl_add_u32 v18, v19, 4, v18\nv_add_u32 v%d, %d, v18\nv_xor_b32 v%d, 64, v%d", vSC, FO + 128 * p0, vSC + 1, vSC)
                    offs = [(vSC + ((q >> 1) & 1), (q >> 1) * FCS + (q & 1) * 512) for q in range(16)]
                for q, (a, o) in enumerate(offs):
                    e("ds_read_b128 %s, v%d offset:%d", vr(64 + 4 * q, 4), a, o)
                if w < len(jobs) - 1:
                    e("s_branch %s", go)
                e.label(nxt)
            e.label(go)
            e("v_lshlrev_b32 v17, 3, v16\nv_and_b32 v18, 7, v0\nv_add_u32 v17, v17, v18\nv_lshl_add_u32 v17, v17, 4, s64")
            e("v_cmp_gt_u32 vcc, 8, v1\nv_cndmask_b32 v17, v%d, v17, vcc\nv_cmp_gt_u32 vcc, s65, v16\nv_cndmask_b32 v%d, v%d, v17, vcc", vSS, vSS, vSS)
            e("v_lshrrev_b32 v60, 1, v1\nv_and_b32 v1, 1, v1\nv_lshlrev_b32 v1, 4, v1\nv_mov_b32 v61, 0x3f80\nv_lshlrev_b32 v61, v1, v61\nv_mov_b32 v62, 0")
            for j in range(4):
                e("v_cmp_eq_u32 vcc, %d, v60\nv_cndmask_b32 v%d, v62, v61, vcc", j, 16 + j)
            e("s_waitcnt lgkmcnt(0)")
            for q in range(16):
                e("v_mfma_f32_16x16x32_bf16 v[60:63], %s, v[16:19], %s", vr(64 + 4 * q, 4), "v[60:63]" if q else "0")
            e.label(done)
            vm.issue("svst", "buffer_store_dwordx4 v[60:63], v%d, s[%d:%d], 0 offen sc1", vSS, WS, WS + 3)
            if r is Q:
                e("v_mov_b32 v16, -1\nv_mov_b32 v17, -1\nv_mov_b32 v18, -1\nv_mov_b32 v19, -1\ns_mul_i32 s64, s%d, %d", sRB, KVP_RB)
                vm.issue("svst", "buffer_store_dwordx4 v[16:19], v%d, s[%d:%d], s64 offen sc1", vKVA, WS, WS + 3)

        def kv_load(i):
            e("s_lshl_b32 s64, s%d, 1\ns_add_u32 s64, s64, %d\ns_and_b32 s64, s64, 15\ns_mul_i32 s64, s64, %d", sRB, i, KVP_RB)
            return "buffer_load_dwordx4 %s, v%d, s[%d:%d], s64 offen sc1" % (vr(KV + 4 * i, 4), vKVA, WS, WS + 3)

        def kv_prepare():
            e("v_and_b32 v1, 15, v0\nv_lshrrev_b32 v16, 4, v0\nv_and_b32 v17, 1, v1\nv_lshlrev_b32 v17, 4, v17\nv_mov_b32 v18, 0x3f80\nv_lshlrev_b32 v18, v17, v18")
            e("v_lshrrev_b32 v17, 1, v1\nv_lshlrev_b32 v19, 2, v16\nv_sub_u32 v17, v17, v19\nv_mov_b32 v19, 0")
            for s_ in range(2):
                for j in range(4):
                    e("v_cmp_eq_u32 vcc, %d, v17\nv_cndmask_b32 v%d, v19, v18, vcc", j - 8 * s_, 44 + 4 * s_ + j)
            e("v_lshrrev_b32 v17, 1, v16\nv_lshl_add_u32 v1, v17, 4, v1\nv_and_b32 v16, 1, v16\nv_lshlrev_b32 v16, 3, v16")
            e("s_lshl_b32 s64, s%d, 10\ns_add_u32 s64, s64, %d\nv_lshl_add_u32 v1, v1, 4, s64\nv_add_u32 v43, v1, v16", sW, KVSUM)

        def kv_sum():
            vm.wait("kvl")
            e("s_mov_b32 s%d, %d", sT3, SPIN_MAX)
            e.label("L_kvsum")
            for i in range(16):
                for s_ in range(2):
                    d = vr(52 + 4 * s_, 4)
                    e("v_mfma_f32_16x16x32_bf16 %s, %s, %s, %s", d, vr(44 + 4 * s_, 4), vr(KV + 4 * i, 4), d if i else "0")
            e("v_add_f32 v1, v52, v56\nv_cmp_u_f32 vcc, v1, v1\ns_cbranch_vccz L_kvok\ns_mov_b32 s66, 0")
            for i in range(16):
                skip, c = e.newlabel("kv"), KV + 4 * i
                e("v_max3_u32 v1, v%d, v%d, v%d\nv_max_u32 v1, v1, v%d\nv_cmp_eq_u32 vcc, -1, v1\ns_cbranch_vccz %s\ns_mov_b32 s66, 1", c, c + 1, c + 2, c + 3, skip)
                e(kv_load(i))
                e.label(skip)
            e("s_cmp_eq_u32 s66, 0\ns_cbranch_scc1 L_kvok\ns_waitcnt vmcnt(0)\ns_sub_u32 s%d, s%d, 1\ns_cbranch_scc0 L_kvsum", sT3, sT3)
            e.label("L_kvok")
            self.stamp(1, "kvok")
            for s_ in range(2):
                for j in range(2):
                    e("v_cvt_pk_bf16_f32 v%d, v%d, v%d", 60 + 2 * s_ + j, 52 + 4 * s_ + 2 * j, 53 + 4 * s_ + 2 * j)
            e("ds_write_b64 v43, v[60:61]\nds_write_b64 v43, v[62:63] offset:512\ns_waitcnt lgkmcnt(0)")

        gate = [(PDBG, None, 0)], [4], M_GATE
        s1 = [(FB, sOG, (C_S1 + 8 * r.idx) * 128), (FB, sORB, C_ST * 128)], [16, 8], M_S1
        rows = lambda c, box: ([(FB, sOA, c * 128), (FB, sOB, c * 128)], [8, 8], box)

        vm.wait("t0b")
        e("s_waitcnt lgkmcnt(0)\ns_barrier")
        self.stamp(2, "b0")
        tile_b(1)
        colsum()
        tile_a(2)
        for n in range(1, 11):
            if n <= 9:
                vm.wait("t%d" % n)
            if n == 2:
                vm.wait("svst")
                self.check(*gate)
            e("s_barrier")
            if n in (1, 4, 7):
                self.stamp({1: 6, 4: 14, 7: 15}[n], "b%d" % n)
            if n == 2:
                e("v_mov_b32 v%d, 1", vU)
                vm.issue("flag", "buffer_atomic_add v%d, v%d, s[%d:%d], 0 offen", vU, vMY, WS, WS + 3)
            if n == 1:
                self.poll(gate[0])
                tile_b(2)
            if n == 6:
                self.poll(s1[0])
            if n < 8:
                tile(n + 2)
            if n == 7:
                self.check(*s1)
                e("s_lshl_b32 s66, s%d, 11\ns_lshl_b32 s65, s%d, 9\ns_add_u32 s66, s66, s65\ns_mov_b32 exec_hi, 0", sRB, sW)
                dma("cs", 65, ST, 66, WS_STATS, vL16, WS, " sc1")
                e("s_mov_b64 exec, -1")
                for q in range(10):
                    if q % 4 == 0:
                        e("s_mov_b32 s64, %d", q * 1024)
                    vm.issue("cs", "buffer_load_dword v%d, v%d, s[%d:%d], s64 offen offset:%d sc1", 32 + q, vCSA, WS, WS + 3, (q % 4) * 1024)
                if r is F and "nowarm" not in self.opt:
                    vm.issue("wm", "buffer_load_dword v254, v%d, s[%d:%d], 0 offen", vW0, W2, W2 + 3)
                    vm.issue("wm", "buffer_load_dword v255, v%d, s[%d:%d], 0 offen", vW1, WO, WO + 3)
            if n == 9:
                vm.wait("cs")
                for a_, b_ in ((0, 5), (1, 6), (2, 7), (3, 8), (4, 9), (0, 1), (2, 3), (0, 2), (0, 4)):
                    e("v_add_f32 v%d, v%d, v%d", 32 + a_, 32 + a_, 32 + b_)
                e("ds_write_b32 v%d, v32\ns_waitcnt lgkmcnt(0)", vCSW)
        self.stamp(3, "b10")
        for j in range(r.nb):
            btile(j)
        self.stamp(5, "Bissued")
        if r is F:
            self.lds_wait(M_HCNT, 4, nap=2)
        else:
            kv_prepare()
        self.poll(rows(C_H, M_H)[0])
        self.check(*rows(C_H, M_H))
        self.stamp(4, "hpoll")
        atile(0)
        atile(1)
        k0 = self.k0
        for n in range(17):
            vm.wait("A%d" % n)
            vm.wait("B%d" % n)
            if n == 16:
                vm.wait_all()
            e("s_barrier")
            if n in (0, 3, 9, 12, 16):
                self.stamp({0: 7, 3: 8, 9: 9, 12: 11, 16: 12}[n], "p%d" % n)
            if n == 10:
                self.poll(rows(C_O, M_O)[0])
            if n + 2 <= 16 and n not in (10, 11):
                atile(n + 2)
            if r is Q and n in (k0, k0 + 1):
                for i in range(8 * (n - k0), 8 * (n - k0) + 8):
                    vm.issue("kvl", kv_load(i))
            if n >= 1 and n - 1 + r.nb <= 16:
                btile(n - 1 + r.nb)
            if r is Q and n == k0 + 2:
                kv_sum()
            if n == 13:
                xotile()
            if n == 11:
                self.check(*rows(C_O, M_O))
                self.stamp(10, "opoll")
                atile(12)
                atile(13)
        e("v_mov_b32 v7, v%d\ns_branch L_final_%s", vB2, r.name)

    def arrive(self, ctr, line):
        e = self.e
        skip = e.newlabel("arr")
        e("s_lshl_b32 s64, s%d, 7\ns_add_u32 s64, s64, 0x%x", sRB, WS_FLAGS + 128 * line)
        e("v_mov_b32 v252, %d\nv_mov_b32 v253, 1\nv_mov_b32 v255, s64\ns_mov_b64 exec, 1\ns_waitcnt vmcnt(0)", ctr)
        e("ds_add_rtn_u32 v254, v252, v253\ns_waitcnt lgkmcnt(0)\nv_cmp_eq_u32 vcc, 3, v254\ns_cbranch_vccz %s", skip)
        e("buffer_atomic_add v253, v255, s[%d:%d], 0 offen", WS, WS + 3)
        e.label(skip)
        e("s_mov_b64 exec, -1")

    def compute(self, r):
        e = self.e
        sRG, sCG, sSL, sDL, sN = 73, 74, 75, 76, 77
        vG, vJ = 30, 31
        self.who = ("comp",)
        e.label("L_compute_" + r.name)
        e("s_lshr_b32 s%d, s%d, 1\ns_and_b32 s%d, s%d, 1\nv_lshrrev_b32 v%d, 4, v0\nv_and_b32 v%d, 15, v0", sRG, sW, sCG, sW, vG, vJ)
        if r is F:
            e("s_cmp_lg_u32 s2, 0\ns_cbranch_scc1 L_not_leader\ns_waitcnt lgkmcnt(0)")
            self.srd(WS, PWS, WS_SIZE)
            self.srd(DBG, PDBG, 256)
            e("s_mul_i32 s64, s%d, %d\ns_add_u32 s64, s64, 0x%x\nv_lshlrev_b32 v1, 7, v0\nv_mov_b32 v4, 0\ns_mov_b64 exec, 0xffff", sW, C_LINES * 32, WS_FLAGS)
            e("buffer_store_dword v4, v1, s[%d:%d], s64 offen sc1", WS, WS + 3)
            e("v_mov_b32 v2, 1\ns_waitcnt vmcnt(0)\ns_mov_b64 exec, 1")
            e("buffer_atomic_add v2, v4, s[%d:%d], 0 offen\ns_mov_b64 exec, -1", DBG, DBG + 3)
            e.label("L_not_leader")
            e("s_lshl_b32 s64, s%d, 3\ns_add_u32 s64, s64, s%d\ns_lshl_b32 s64, s64, 2\ns_add_u32 s64, s64, s%d\ns_lshl_b32 s65, s64, 2", sRB, sGRP, sW)
            e("v_add_u32 v1, s65, v%d\nv_mul_u32_u24 v1, 1280, v1\nv_lshl_add_u32 v1, v%d, 4, v1\ns_waitcnt lgkmcnt(0)", vG, vJ)
            self.srd(X, PX, 2621440)
            for j in range(5):
                e("buffer_load_dwordx4 %s, v1, s[%d:%d], 0 offen offset:%d", vr(32 + 4 * j, 4), X, X + 3, 256 * j)
            e("s_lshl_b32 s64, s64, 6\ns_add_u32 s64, s64, 0x%x\nv_lshl_add_u32 v1, v%d, 2, s64\nv_lshl_add_u32 v1, v%d, 4, v1", WS_STATS, vG, vJ)
            e("v_mov_b32 v5, 0x%x\nv_cmp_gt_u32 vcc, 3, v%d\nv_cndmask_b32 v13, v5, v1, vcc", OOB, vJ)
        else:
            e("s_waitcnt lgkmcnt(0)")
        self.srd(WS, PWS, WS_SIZE)
        self.srd(OUT, POUT, 2621440)
        self.phase2_ids(r)
        nct = 6 if r is F else 8
        Wb, Xb = (32, 64), (96, 112)
        acc = (lambda ct, mt: 128 + (ct * 4 + mt) * 4)
        for k in range(nct * 16):
            e("v_mov_b32 v%d, 0", 128 + k)
        e("v_lshrrev_b32 v1, 1, v%d\nv_xor_b32 v1, v1, v%d\nv_lshlrev_b32 v1, 4, v1\nv_lshl_add_u32 v1, v%d, 7, v1", vJ, vG, vJ)
        e("s_lshl_b32 s64, s%d, 13\nv_add_u32 v2, s64, v1\nv_xor_b32 v3, 64, v2\nv_lshrrev_b32 v10, 2, v%d\nv_and_b32 v11, 3, v%d", sRG, vJ, vJ)
        if r is Q:
            e("v_and_b32 v15, 1, v11\nv_mul_u32_u24 v15, 40, v15\ns_mul_i32 s65, s%d, 80", sCG)
            for ro, cs, rs, m in ((KO, KCS, 320, 4), (QO, QCS, 160, 6)):
                e("v_mul_u32_u24 v1, %d, v%d\nv_mul_u32_u24 v14, %d, v10\ns_add_u32 s64, s65, %d\nv_add3_u32 v1, v1, v14, s64", cs, vG, rs, ro)
                e("v_lshl_add_u32 v%d, v11, 3, v1\nv_add3_u32 v%d, v1, v15, 32", m, m + 1)
            e("v_lshrrev_b32 v14, 1, v11\nv_mul_u32_u24 v14, 160, v14\nv_add_u32 v5, v5, v14")
            k_, q_ = (4 * KCS, 1280), (4 * QCS, 640)
            waddr = [(6, 0, q_), (6, 40, q_), (7, 0, q_), (4, 0, k_), (4, 40, k_), (5, 0, k_), (4, 160, k_), (4, 200, k_)]
            aregs = [2, 3, 4, 5, 6, 7]
        else:
            e("v_mul_u32_u24 v1, %d, v%d\nv_lshl_add_u32 v1, v10, 7, v1\nv_lshl_add_u32 v1, v11, 3, v1\nv_add_u32 v1, %d, v1", FCS, vG, FO)
            e("v_and_b32 v10, 1, v%d\nv_lshlrev_b32 v10, 1, v10\nv_bfe_u32 v11, v%d, 3, 1\nv_or_b32 v10, v10, v11", vG, vJ)
            for jj in range(6):
                e("s_mul_i32 s64, s%d, 6\ns_add_u32 s64, s64, %d\ns_and_b32 s65, s64, 3\ns_lshr_b32 s64, s64, 2\ns_lshl_b32 s64, s64, 10", sCG, jj)
                e("v_xor_b32 v11, s65, v10\nv_lshl_add_u32 v11, v11, 5, v1\nv_add_u32 v%d, s64, v11", 4 + jj)
            waddr = [(4 + jj, 0, (4 * FCS, 512)) for jj in range(6)]
            aregs = [2, 3, 4, 5, 6, 7, 8, 9]

        def reads(buf, kk):
            out = ["ds_read_b128 %s, v%d offset:%d" % (vr(Xb[buf] + 4 * mt, 4), 2 + kk, 2048 * mt) for mt in range(4)]
            for ct, (a, off, (wkk, wrd)) in enumerate(waddr):
                for rd in range(2):
                    out.append("ds_read_b64_tr_b16 %s, v%d offset:%d" % (vr(Wb[buf] + 4 * ct + 2 * rd, 2), a, off + kk * wkk + rd * wrd))
            return out

        def mfmas(buf):
            out = []
            for ct in range(nct):
                for mt in range(4):
                    w, x, d = vr(Wb[buf] + 4 * ct, 4), vr(Xb[buf] + 4 * mt, 4), vr(acc(ct, mt), 4)
                    a, b = (x, w) if (r is Q and ct >= 3) else (w, x)
                    out.append("v_mfma_f32_16x16x32_bf16 %s, %s, %s, %s" % (d, a, b, d))
            return out

        e("s_mov_b32 s%d, 0\ns_mov_b32 s%d, 10\ns_waitcnt vmcnt(0)", sSL, sN)
        if r is F:
            e("s_mov_b32 s64, 0x3f803f80\nv_mov_b32 v52, 0\nv_mov_b32 v53, 0")
            for j in range(20):
                e("v_dot2c_f32_bf16 v52, s64, v%d\nv_dot2c_f32_bf16 v53, v%d, v%d", 32 + j, 32 + j, 32 + j)
            for ror in (8, 4, 2, 1):
                e("v_add_f32_dpp v52, v52, v52 row_ror:%d row_mask:0xf bank_mask:0xf", ror)
                e("v_add_f32_dpp v53, v53, v53 row_ror:%d row_mask:0xf bank_mask:0xf", ror)
            e("v_mul_f32 v52, 0x%x, v52\nv_mul_f32 v53, 0x%x, v53\nv_fma_f32 v53, -v52, v52, v53\nv_max_f32 v53, 0, v53\nv_add_f32 v53, 0x%x, v53",
              f2u(1.0 / 640), f2u(1.0 / 640), f2u(1e-5))
            e("v_rsq_f32 v54, v53\nv_sqrt_f32 v55, v53\nv_cmp_eq_u32 vcc, 1, v%d\nv_cndmask_b32 v52, v52, v54, vcc", vJ)
            e("v_cmp_eq_u32 vcc, 2, v%d\nv_cndmask_b32 v12, v52, v55, vcc", vJ)
            e("buffer_store_dword v12, v13, s[%d:%d], 0 offen sc1", WS, WS + 3)
        e("s_setprio 3\ns_barrier")
        self.stamp(2, "b0")
        for l in reads(0, 0):
            e(l)
        loop = "L_k_" + r.name
        e.label(loop)
        if r is F:
            e("s_cmp_eq_u32 s%d, 9\ns_cbranch_scc1 L_side_F", sN)
            e.label("L_kb_F")
        e("s_waitcnt lgkmcnt(0)")
        for l in interleave(mfmas(0), reads(1, 1)):
            e(l)
        e("s_mov_b32 s%d, %d\ns_add_u32 s%d, s%d, 1\ns_cmp_eq_u32 s%d, 3\ns_cselect_b32 s%d, %d, s%d\ns_cselect_b32 s%d, 0, s%d",
          sDL, r.slot, sSL, sSL, sSL, sDL, -2 * r.slot & 0xffffffff, sDL, sSL, sSL)
        e("s_waitcnt lgkmcnt(0)\ns_barrier")
        upd = ["v_add_u32 v%d, s%d, v%d" % (a, sDL, a) for a in aregs]
        for l in interleave(mfmas(1), ["\n".join(upd[:4]), "\n".join(upd[4:])] + reads(0, 0)):
            e(l)
        e("s_sub_u32 s%d, s%d, 1\ns_cmp_lg_u32 s%d, 0\ns_cbranch_scc1 %s", sN, sN, sN, loop)
        e("s_waitcnt lgkmcnt(0)")
        self.stamp(3, "kend")
        if r is F:
            self.silu(acc, sRG, sCG, vG, vJ)
        else:
            self.epilogue_kv(acc, sRG, sCG, vG, vJ)
            self.epilogue_q(acc, sRG, sCG, vG, vJ)
        self.phase2(r, sRG, sCG)
        if r is F:
            e.label("L_side_F")
            e("s_waitcnt vmcnt(0)\ns_branch L_kb_F")

    def silu(self, acc, sRG, sCG, vG, vJ):
        e = self.e
        CSr, PAR, T = 32, 56, 72
        e("s_lshl_b32 s64, s%d, 10\ns_add_u32 s64, s64, %d\nv_lshrrev_b32 v1, 2, v%d\nv_lshl_add_u32 v1, v1, 6, s64\nv_and_b32 v2, 3, v%d\nv_lshl_add_u32 v1, v2, 2, v1",
          sRG, ST, vJ, vJ)
        for mt in range(4):
            e("ds_read2_b32 v[%d:%d], v1 offset0:%d offset1:%d\nds_read_b32 v%d, v1 offset:%d",
              PAR + 4 * mt, PAR + 4 * mt + 1, mt * 64, mt * 64 + 4, PAR + 4 * mt + 2, mt * 256 + 32)
        e("s_mul_i32 s64, s%d, 384\ns_add_u32 s64, s64, %d\nv_lshl_add_u32 v2, v%d, 4, s64", sCG, CS, vG)
        for jj in range(6):
            e("ds_read_b128 %s, v2 offset:%d", vr(CSr + 4 * jj, 4), jj * 64)
        e("s_lshl_b32 s64, s%d, 3\ns_lshl_b32 s65, s%d, 2\ns_add_u32 s64, s64, s65\ns_mul_i32 s66, s64, %d", sRB, sRG, RT_STRIDE)
        e("s_mul_i32 s64, s%d, 6\ns_mul_i32 s65, s%d, 3\ns_add_u32 s64, s64, s65\ns_lshl_b32 s64, s64, 10\ns_add_u32 s66, s66, s64", sGRP, sCG)
        e("v_lshlrev_b32 v3, 4, v0\ns_waitcnt lgkmcnt(0)")
        for mt in range(4):
            e("v_sub_f32 v%d, 0, v%d\nv_mul_f32 v%d, 0x%x, v%d", PAR + 4 * mt, PAR + 4 * mt, PAR + 4 * mt + 1, f2u(-LOG2E), PAR + 4 * mt + 1)
        k = 0
        for mt in range(4):
            p, sg = vr(PAR + 4 * mt, 2), vr(PAR + 4 * mt + 2, 2)
            for j in range(3):
                t, o = T + 8 * (k % 2), T + 16 + 4 * (k % 4)
                k += 1
                prs = [(acc(2 * j + h, mt) + 2 * q, CSr + 4 * (2 * j + h) + 2 * q, t + 4 * h + 2 * q) for h in range(2) for q in range(2)]
                for a, c, w in prs:
                    e("v_pk_fma_f32 %s, %s, %s, %s op_sel_hi:[1,0,1]", vr(a, 2), vr(c, 2), p, vr(a, 2))
                for a, c, w in prs:
                    e("v_pk_mul_f32 %s, %s, %s op_sel:[0,1] op_sel_hi:[1,1]", vr(w, 2), vr(a, 2), p)
                for i in range(8):
                    e("v_exp_f32 v%d, v%d", t + i, t + i)
                for a, c, w in prs:
                    e("v_pk_fma_f32 %s, %s, %s, %s op_sel_hi:[1,0,0]", vr(w, 2), vr(w, 2), sg, sg)
                for i in range(8):
                    e("v_rcp_f32 v%d, v%d", t + i, t + i)
                for a, c, w in prs:
                    e("v_pk_mul_f32 %s, %s, %s", vr(w, 2), vr(w, 2), vr(a, 2))
                for i in range(4):
                    e("v_cvt_pk_bf16_f32 v%d, v%d, v%d", o + i, t + 2 * i, t + 2 * i + 1)
                e("buffer_store_dwordx4 %s, v3, s[%d:%d], s66 offen offset:%d sc1", vr(o, 4), WS, WS + 3, j * 1024)
            if mt < 3:
                e("s_add_u32 s66, s66, %d", RT_STRIDE)
        self.stamp(4, "Est")
        self.arrive(M_HCNT, C_H)
        self.stamp(5, "Eend")

    def phi(self, prs, t):
        e = self.e
        for i, (u, d) in enumerate(prs):
            e("v_pk_mul_f32 %s, %s, s[78:79]", vr(t + 2 * i, 2), vr(u, 2))
        for i in range(2 * len(prs)):
            e("v_exp_f32_e64 v%d, v%d clamp", t + i, t + i)
        for i, (u, d) in enumerate(prs):
            e("v_max_f32 v%d, s80, v%d\nv_max_f32 v%d, s80, v%d", t + 8 + 2 * i, u, t + 9 + 2 * i, u + 1)
        for i, (u, d) in enumerate(prs):
            e("v_pk_add_f32 %s, %s, %s", vr(t + 2 * i, 2), vr(t + 2 * i, 2), vr(t + 8 + 2 * i, 2))
        for i, (u, d) in enumerate(prs):
            e("v_cvt_pk_bf16_f32 v%d, v%d, v%d", d, t + 2 * i, t + 2 * i + 1)

    def epilogue_kv(self, acc, sRG, sCG, vG, vJ):
        e = self.e
        PAR, CSK, CSV, CSX, T, XB, P = 32, 64, 66, 68, 70, 92, 100
        e("s_mov_b32 s78, 0x%x\ns_mov_b32 s79, 0x%x\ns_mov_b32 s80, 0x%x\ns_mov_b32 s81, 0x%x", f2u(LOG2E), f2u(LOG2E), f2u(1e-6), f2u(1e-6))
        e("s_lshl_b32 s64, s%d, 10\ns_add_u32 s64, s64, %d\nv_lshl_add_u32 v1, v%d, 6, s64", sRG, ST, vG)
        for mt in range(4):
            e("ds_read_b128 %s, v1 offset:%d\nds_read_b128 %s, v1 offset:%d", vr(PAR + 8 * mt, 4), mt * 256, vr(PAR + 8 * mt + 4, 4), mt * 256 + 16)
        e("s_mul_i32 s64, s%d, 160\ns_add_u32 s64, s64, %d\nv_lshl_add_u32 v2, v%d, 2, s64", sCG, CS, vJ)
        e("ds_read2_b32 v[%d:%d], v2 offset0:0 offset1:20\nds_read2_b32 v[%d:%d], v2 offset0:80 offset1:100", CSK, CSK + 1, CSV, CSV + 1)
        e("v_lshrrev_b32 v3, 3, v%d\nv_mul_u32_u24 v3, 320, v3\nv_bfe_u32 v4, v%d, 2, 1\nv_mul_u32_u24 v4, 80, v4\nv_add_u32 v3, v3, v4", vJ, vJ)
        e("v_and_b32 v4, 3, v%d\nv_lshl_add_u32 v3, v4, 2, v3\nv_add_u32 v3, s64, v3\nds_read_b32 v%d, v3 offset:64", vJ, CSX)
        e("v_cmp_gt_u32 s[82:83], 8, v%d\nv_mov_b32 v4, 0\nv_mov_b32 v5, s80\nv_cndmask_b32 v%d, v4, v5, s[82:83]", vJ, CSX + 1)
        e("v_mov_b32 v6, 0x3f803f80\ns_waitcnt lgkmcnt(0)")
        for mt in range(4):
            for q in range(2):
                m, s = vr(PAR + 8 * mt + 2 * q, 2), vr(PAR + 8 * mt + 4 + 2 * q, 2)
                e("v_pk_mul_f32 %s, %s, %s neg_lo:[1,0] neg_hi:[1,0]", m, m, s)

        def norm(ct, mt, cs, hi, eps):
            sel = "op_sel:[0,%d%s] op_sel_hi:[1,%d%s]"
            for q in range(2):
                rm, t = vr(PAR + 8 * mt + 2 * q, 2), vr(T + 16 + 2 * q, 2)
                if eps == "s":
                    e("v_pk_fma_f32 %s, %s, %s, s[80:81] " + sel % (hi, ",0", hi, ",1"), t, rm, vr(cs, 2))
                elif eps == "v":
                    e("v_pk_fma_f32 %s, %s, %s, %s " + sel % (0, ",1", 0, ",1"), t, rm, vr(cs, 2), vr(cs, 2))
                else:
                    e("v_pk_mul_f32 %s, %s, %s " + sel % (hi, "", hi, ""), t, rm, vr(cs, 2))
            for q in range(2):
                a = vr(acc(ct, mt) + 2 * q, 2)
                e("v_pk_fma_f32 %s, %s, %s, %s", a, a, vr(PAR + 8 * mt + 4 + 2 * q, 2), vr(T + 16 + 2 * q, 2))

        for m in range(2):
            for h in range(2):
                mt = 2 * m + h
                for ct, hi in ((6, 0), (7, 1)):
                    norm(ct, mt, CSV, hi, None)
                    for q in range(2):
                        e("v_cvt_pk_bf16_f32 v%d, v%d, v%d", acc(ct, 2 * m) + 2 * h + q, acc(ct, mt) + 2 * q, acc(ct, mt) + 2 * q + 1)
                norm(3, mt, CSK, 0, "s")
                norm(4, mt, CSK, 1, "s")
                self.phi([(acc(ct, mt) + 2 * q, acc(ct, 2 * m) + 2 * h + q) for ct in (3, 4) for q in range(2)], T)
                norm(5, mt, CSX, 0, "v")
                for q in range(2):
                    e("v_cvt_pk_bf16_f32 v%d, v%d, v%d", T + 18 + q, acc(5, mt) + 2 * q, acc(5, mt) + 2 * q + 1)
                for q in range(2):
                    e("v_cndmask_b32 v%d, v%d, v6, s[82:83]", XB + 4 * m + 2 * h + q, T + 18 + q)
                self.phi([(acc(5, mt) + 2 * q, acc(5, 2 * m) + 2 * h + q) for q in range(2)], T)
            KA, KB, XA, VA, VB = (vr(acc(ct, 2 * m), 4) for ct in (3, 4, 5, 6, 7))
            xb = vr(XB + 4 * m, 4)
            for i, (a, b) in enumerate(((KA, VA), (KA, xb), (XA, VA), (KB, VB), (KB, xb), (XA, VB), (XA, xb))):
                d = vr(P + 4 * i, 4)
                e("v_mfma_f32_16x16x32_bf16 %s, %s, %s, %s", d, a, b, d if m else "0")
        e("s_mul_i32 s64, s%d, 6720\ns_mul_i32 s65, s%d, 3360\ns_add_u32 s64, s64, s65\ns_add_u32 s64, s64, %d", sRG, sCG, SCAT)
        e("v_mul_u32_u24 v1, 80, v%d\nv_add_u32 v1, s64, v1\nv_lshl_add_u32 v2, v%d, 4, v1", vJ, vG)
        e("v_and_b32 v3, 3, v%d\nv_mul_u32_u24 v3, 80, v3\nv_add_u32 v3, 1280, v3\nv_mov_b32 v4, 1600\nv_cmp_eq_u32 vcc, 0, v%d\nv_cndmask_b32 v3, v3, v4, vcc", vJ, vJ)
        e("v_add_u32 v3, s64, v3\nv_lshl_add_u32 v4, v%d, 4, v3\nv_mul_u32_u24 v5, 1680, v%d\nv_add_u32 v1, v1, v5\nv_add_u32 v3, v3, v5", vG, vG)

        def mask(fn):
            m = sum(1 << l for l in range(64) if fn(l >> 4, l & 15))
            e("s_mov_b32 exec_lo, 0x%x\ns_mov_b32 exec_hi, 0x%x", m & 0xffffffff, m >> 32)
        ina = lambda n: n == 0 or 8 <= n < 12
        inb = lambda n: n == 0 or 12 <= n
        e("ds_write_b128 v2, %s\nds_write_b128 v2, %s offset:1680", vr(P, 4), vr(P + 12, 4))
        mask(lambda g, n: ina(n))
        e("ds_write_b128 v4, %s", vr(P + 4, 4))
        mask(lambda g, n: inb(n))
        e("ds_write_b128 v4, %s offset:1680", vr(P + 16, 4))
        mask(lambda g, n: g == 0)
        e("ds_write_b128 v1, %s offset:64", vr(P + 8, 4))
        mask(lambda g, n: g == 1)
        e("ds_write_b128 v1, %s offset:64", vr(P + 20, 4))
        mask(lambda g, n: (g == 0 and ina(n)) or (g == 1 and inb(n)))
        e("ds_write_b128 v3, %s offset:64", vr(P + 24, 4))
        e("s_lshl_b32 s64, s%d, 2\ns_add_u32 s64, s64, %d\ns_mov_b64 exec, -1\nv_mov_b32 v1, s64\nv_mov_b32 v2, 1\ns_mov_b64 exec, 1\ns_waitcnt lgkmcnt(0)", sCG, M_PAIR)
        e("ds_add_u32 v1, v2\ns_mov_b64 exec, -1")
        e("s_lshl_b32 s64, s%d, 6\nv_add_u32 v3, s64, v0\ns_mul_i32 s65, s%d, 3360\ns_add_u32 s65, s65, %d\nv_lshl_add_u32 v4, v3, 5, s65", sRG, sCG, SCAT)
        e("s_mul_i32 s64, s%d, %d\ns_mul_i32 s65, s%d, %d\ns_add_u32 s64, s64, s65\ns_mul_i32 s65, s%d, 1680\ns_add_u32 s64, s64, s65\ns_add_u32 s64, s64, 0x%x",
          sGRP, 16 * KVP_RB, sRB, KVP_RB, sCG, WS_KVP)
        e("v_lshl_add_u32 v5, v3, 4, s64\nv_mov_b32 v6, 0x%x\nv_cmp_gt_u32 vcc, 105, v3\nv_cndmask_b32 v5, v6, v5, vcc", OOB)
        self.lds_wait(None, 2, va=1, nap=0)
        e("ds_read_b128 v[52:55], v4\nds_read_b128 v[56:59], v4 offset:16\nds_read_b128 v[60:63], v4 offset:6720\nds_read_b128 v[64:67], v4 offset:6736")
        e("s_lshl_b32 s64, s%d, 10\ns_add_u32 s64, s64, %d\nv_lshrrev_b32 v1, 2, v%d\nv_lshl_add_u32 v1, v1, 6, s64\nv_and_b32 v2, 3, v%d\nv_lshl_add_u32 v1, v2, 2, v1",
          sRG, ST, vJ, vJ)
        for mt in range(4):
            e("ds_read2_b32 v[%d:%d], v1 offset0:%d offset1:%d", 32 + 2 * mt, 33 + 2 * mt, mt * 64, mt * 64 + 4)
        e("s_mul_i32 s64, s%d, 160\ns_add_u32 s64, s64, %d\nv_lshl_add_u32 v2, v%d, 4, s64", sCG, CS + 640, vG)
        e("ds_read_b128 v[40:43], v2\nds_read_b128 v[44:47], v2 offset:80")
        e("v_and_b32 v2, 1, v%d\nv_mul_u32_u24 v2, 80, v2\nv_add_u32 v2, s64, v2\nds_read_b128 v[48:51], v2 offset:64\ns_waitcnt lgkmcnt(7)", vG)
        for j in range(4):
            e("v_pk_add_f32 %s, %s, %s", vr(52 + 2 * j, 2), vr(52 + 2 * j, 2), vr(60 + 2 * j, 2))
        for j in range(4):
            e("v_cvt_pk_bf16_f32 v%d, v%d, v%d", 92 + j, 52 + 2 * j, 53 + 2 * j)
        e("buffer_store_dwordx4 v[92:95], v5, s[%d:%d], 0 offen sc1\ns_waitcnt lgkmcnt(0)", WS, WS + 3)
        self.stamp(4, "Est")

    def epilogue_q(self, acc, sRG, sCG, vG, vJ):
        e = self.e
        PAR, CQ, T = 32, 40, 70
        for mt in range(4):
            e("v_mul_f32_e64 v%d, -v%d, v%d", PAR + 2 * mt, PAR + 2 * mt, PAR + 2 * mt + 1)
        dst = {0: 0, 2: 2, 1: 4}
        for mt in range(4):
            p = vr(PAR + 2 * mt, 2)
            for grp in ((0, 2), (1,)):
                for ct in grp:
                    for q in range(2):
                        e("v_pk_fma_f32 %s, %s, %s, s[80:81] op_sel_hi:[1,0,1]", vr(T + 16 + 2 * q, 2), vr(CQ + 4 * ct + 2 * q, 2), p)
                    for q in range(2):
                        a = vr(acc(ct, mt) + 2 * q, 2)
                        e("v_pk_fma_f32 %s, %s, %s, %s op_sel:[0,1,0] op_sel_hi:[1,1,1]", a, a, p, vr(T + 16 + 2 * q, 2))
                self.phi([(acc(ct, mt) + 2 * q, 8 + 6 * mt + dst[ct] + q) for ct in grp for q in range(2)], T)
        self.stamp(5, "Eend")

    O_AO, O_DD, O_OO, O_AD = 224, (96, 144, 168, 192), (120, 216), 248

    def o_prepare(self, sRG, sCG, vG, vJ):
        e = self.e
        a = self.O_AD
        e("s_mul_i32 s64, s%d, 1680\ns_add_u32 s64, s64, %d\nv_mul_u32_u24 v%d, 40, v%d\nv_add_u32 v%d, s64, v%d", sCG, KVSUM, a, vJ, a, a)
        e("v_and_b32 v1, 3, v%d\nv_mul_u32_u24 v1, 40, v1\ns_add_u32 s65, s64, 640\nv_add_u32 v%d, s65, v1\ns_add_u32 s65, s64, 800\nv_mov_b32 v%d, s65", vJ, a + 1, a + 2)
        e("v_lshlrev_b32 v%d, 3, v%d", a + 3, vG)
        e("s_lshl_b32 s64, s%d, 3\ns_lshl_b32 s65, s%d, 2\ns_add_u32 s64, s64, s65\ns_mul_i32 s82, s64, %d", sRB, sRG, RT_STRIDE)
        e("s_lshl_b32 s64, s%d, 1\ns_add_u32 s64, s64, s%d\ns_lshl_b32 s65, s64, 10\ns_add_u32 s83, s82, s65\ns_add_u32 s83, s83, %d", sGRP, sCG, 48 * 1024)
        e("s_lshr_b32 s65, s64, 2\ns_lshl_b32 s65, s65, 10\ns_and_b32 s64, s64, 3\ns_lshl_b32 s64, s64, 8\ns_add_u32 s82, s82, s65\ns_add_u32 s82, s82, s64\ns_add_u32 s82, s82, %d", 64 * 1024)
        for h in range(2):
            for k in range(3):
                hi = self.O_AO + 12 * h + 4 * k + 2 - 2 * h
                e("v_mov_b32 v%d, 0\nv_mov_b32 v%d, 0", hi, hi + 1)

    def ostage(self):
        e = self.e
        AO, DD, OO, a = self.O_AO, self.O_DD, self.O_OO, self.O_AD
        for h in range(2):
            e("s_mov_b32 exec_lo, 0x%x\ns_mov_b32 exec_hi, 0", 0xffff << (16 * h))
            for k in range(3):
                e("ds_read_b64 %s, v%d offset:%d", vr(AO + 12 * h + 4 * k + 2 - 2 * h, 2), a + k, 840 * h + 32)
        e("s_mov_b64 exec, -1")
        for k in range(3):
            e("v_add_u32 v%d, v%d, v%d", 120 + k, a + k, a + 3)
        for h in range(2):
            for k in range(3):
                e("ds_read_b64 %s, v%d offset:%d", vr(AO + 12 * h + 4 * k + 2 * h, 2), 120 + k, 840 * h)
        e("v_lshlrev_b32 v1, 4, v0\ns_waitcnt lgkmcnt(0)")
        for mt in range(4):
            for h in range(2):
                for k in (2, 0, 1):
                    e("v_mfma_f32_16x16x32_bf16 %s, %s, %s, 0", vr(DD[mt] + 12 * h + 4 * k, 4), vr(AO + 12 * h + 4 * k, 4), vr(8 + 6 * mt + 2 * h, 4))
        for mt in range(4):
            d, o = DD[mt], OO[mt & 1]
            for h in range(2):
                e("v_add_f32 v%d, 0x%x, v%d", d + 12 * h + 8, f2u(1e-6), d + 12 * h + 8)
            for h in range(2):
                e("v_rcp_f32 v%d, v%d", d + 12 * h + 8, d + 12 * h + 8)
            for h in range(2):
                for q in range(4):
                    x = vr(d + 12 * h + 2 * q, 2)
                    e("v_pk_mul_f32 %s, %s, %s op_sel_hi:[1,0]", x, x, vr(d + 12 * h + 8, 2))
            for h in range(2):
                for q in range(2):
                    e("v_cvt_pk_bf16_f32 v%d, v%d, v%d", o + 2 * h + q, d + 12 * h + 2 * q, d + 12 * h + 2 * q + 1)
                    e("v_cvt_pk_bf16_f32 v%d, v%d, v%d", o + 4 + 2 * h + q, d + 12 * h + 4 + 2 * q, d + 12 * h + 5 + 2 * q)
            e("buffer_store_dwordx4 %s, v1, s[%d:%d], s83 offen sc1\ns_add_u32 s83, s83, %d\ns_mov_b64 exec, 0xffff", vr(o, 4), WS, WS + 3, RT_STRIDE)
            e("buffer_store_dwordx4 %s, v1, s[%d:%d], s82 offen sc1\ns_add_u32 s82, s82, %d\ns_mov_b64 exec, -1", vr(o + 4, 4), WS, WS + 3, RT_STRIDE)

    def phase2(self, r, sRG, sCG):
        e = self.e
        sN, sAI, sBI, sDA, sDB = 77, 75, 76, 78, 79
        rw = r.rt // 2
        FR, ACC = 32, 128
        per = 4 * rw + 8
        vG, vJ = 152, 153
        e("v_lshrrev_b32 v%d, 4, v0\nv_and_b32 v%d, 15, v0", vG, vJ)
        e("s_mul_i32 s64, s%d, %d\nv_lshl_add_u32 v2, v0, 4, s64", sRG, rw * 1024)
        e("v_lshrrev_b32 v1, 2, v0\nv_lshrrev_b32 v3, 3, v0\nv_and_b32 v3, 3, v3\ns_lshl_b32 s64, s%d, 1\nv_xor_b32 v3, s64, v3", sCG)
        e("v_lshlrev_b32 v3, 5, v3\nv_lshl_add_u32 v3, v1, 7, v3\nv_and_b32 v1, 3, v0\nv_lshl_add_u32 v3, v1, 3, v3")
        e("v_add_u32 v3, %d, v3\nv_xor_b32 v4, 32, v3", r.bbase)
        e("v_bfe_u32 v1, v%d, 1, 2\nv_xor_b32 v1, s64, v1\nv_lshlrev_b32 v1, 5, v1\nv_lshl_add_u32 v1, v%d, 7, v1\nv_lshl_add_u32 v1, v%d, 3, v1", vJ, vJ, vG)
        e("s_mul_i32 s64, s%d, %d\ns_add_u32 s64, s64, %d\nv_add_u32 v5, s64, v1\nv_xor_b32 v6, 32, v5", sRG, rw * 2048, r.xo)
        self.swz128(7, 1, 1280)
        if r is Q:
            self.o_prepare(sRG, sCG, vG, vJ)
        for k in range(rw * 8):
            e("v_mov_b32 v%d, 0", ACC + k)
        e("s_mov_b32 s%d, 0\ns_mov_b32 s%d, 0\ns_mov_b32 s%d, 0", sN, sAI, sBI)

        def reads(s):
            f = FR + per * s
            out = ["ds_read_b128 %s, v2 offset:%d" % (vr(f + 4 * k, 4), (s * r.rt + k) * 1024) for k in range(rw)]
            for u in range(2):
                for rd in range(2):
                    out.append("ds_read_b64_tr_b16 %s, v%d offset:%d" % (vr(f + 4 * rw + 4 * u + 2 * rd, 2), 3 + u, s * 4096 + rd * 2048))
            return out

        def mfmas(s):
            f = FR + per * s
            out = []
            for k in range(rw):
                for u in range(2):
                    d = vr(ACC + 8 * k + 4 * u, 4)
                    out.append("v_mfma_f32_16x16x32_bf16 %s, %s, %s, %s" % (d, vr(f + 4 * rw + 4 * u, 4), vr(f + 4 * k, 4), d))
            return out

        nr = rw + 4
        loop, back, last = ("L_p2%s_%s" % (x, r.name) for x in ("", "b", "l"))
        e("s_barrier")
        for l in reads(0) + reads(1):
            e(l)
        e.label(loop)
        if r is Q:
            e("s_bitcmp1_b32 %d, s%d\ns_cbranch_scc1 L_state", 3 << (self.k0 + 3), sN)
        e.label(back)
        e("s_waitcnt lgkmcnt(%d)", nr)
        for l in interleave(mfmas(0), reads(2)):
            e(l)
        e("s_mov_b32 s%d, %d\ns_add_u32 s%d, s%d, 1\ns_cmp_eq_u32 s%d, 3\ns_cselect_b32 s%d, %d, s%d\ns_cselect_b32 s%d, 0, s%d",
          sDA, r.aslot, sAI, sAI, sAI, sDA, -2 * r.aslot & 0xffffffff, sDA, sAI, sAI)
        e("s_waitcnt lgkmcnt(%d)", nr)
        for l in interleave(mfmas(1), reads(3)):
            e(l)
        e("s_mov_b32 s%d, 16384\ns_add_u32 s%d, s%d, 1\ns_cmp_eq_u32 s%d, %d\ns_cselect_b32 s%d, %d, s%d\ns_cselect_b32 s%d, 0, s%d",
          sDB, sBI, sBI, sBI, r.nb, sDB, -(r.nb - 1) * 16384 & 0xffffffff, sDB, sBI, sBI)
        e("s_waitcnt lgkmcnt(%d)", nr)
        for l in interleave(mfmas(2), ["v_add_u32 v2, s%d, v2" % sDA, "v_add_u32 v3, s%d, v3" % sDB, "v_add_u32 v4, s%d, v4" % sDB]):
            e(l)
        e("s_add_u32 s%d, s%d, 1\ns_cmp_eq_u32 s%d, 17\ns_cbranch_scc1 %s", sN, sN, sN, last)
        e("s_waitcnt lgkmcnt(0)\ns_barrier")
        nxt = reads(0) + reads(1)
        for l in interleave(mfmas(3), ["\n".join(nxt[i:i + 3]) for i in range(0, len(nxt), 3)]):
            e(l)
        e("s_branch %s", loop)
        e.label(last)
        XR = 112
        for k in range(rw):
            for u in range(2):
                e("ds_read_b64 %s, v%d offset:%d", vr(XR + 4 * k + 2 * u, 2), 5 + u, k * 2048)
        e("s_waitcnt lgkmcnt(%d)", 2 * rw)
        for l in mfmas(3):
            e(l)
        e("s_waitcnt lgkmcnt(0)")
        self.stamp(12, "pend")
        for k in range(rw):
            for u in range(2):
                x, t = XR + 4 * k + 2 * u, 32 + 8 * k + 4 * u
                e("v_lshlrev_b32 v%d, 16, v%d\nv_and_b32 v%d, 0xffff0000, v%d\nv_lshlrev_b32 v%d, 16, v%d\nv_and_b32 v%d, 0xffff0000, v%d",
                  t, x, t + 1, x, t + 2, x + 1, t + 3, x + 1)
        for k in range(rw):
            for u in range(2):
                x, a, t = XR + 4 * k + 2 * u, ACC + 8 * k + 4 * u, 32 + 8 * k + 4 * u
                e("v_pk_add_f32 %s, %s, %s\nv_pk_add_f32 %s, %s, %s", vr(a, 2), vr(a, 2), vr(t, 2), vr(a + 2, 2), vr(a + 2, 2), vr(t + 2, 2))
                e("v_cvt_pk_bf16_f32 v%d, v%d, v%d\nv_cvt_pk_bf16_f32 v%d, v%d, v%d", x, a, a + 1, x + 1, a + 2, a + 3)
                e("ds_write_b64 v%d, %s offset:%d", 5 + u, vr(x, 2), k * 2048)
        e("s_waitcnt lgkmcnt(0)")
        e.label("L_final_" + r.name)
        e("s_barrier")
        e("s_lshl_b32 s64, s%d, 10\ns_add_u32 s64, s64, %d\nv_lshl_add_u32 v1, v0, 4, s64\nds_read_b128 v[8:11], v1", sWAVE, r.xo)
        if r.rt == 6:
            e("ds_read_b128 v[12:15], v1 offset:8192")
        e("s_mul_i32 s66, s%d, 20480\ns_lshl_b32 s65, s%d, 7\ns_add_u32 s66, s66, s65\ns_mul_i32 s65, s%d, 10240\ns_add_u32 s66, s66, s65",
          sRT0, sCBG, sWAVE)
        e("s_waitcnt lgkmcnt(0)")
        e("buffer_store_dwordx4 v[8:11], v7, s[%d:%d], s66 offen sc1", OUT, OUT + 3)
        if r.rt == 6:
            e("s_cmp_ge_u32 s%d, 4\ns_cbranch_scc1 L_done_6\ns_add_u32 s66, s66, 81920", sWAVE)
            e("buffer_store_dwordx4 v[12:15], v7, s[%d:%d], s66 offen sc1", OUT, OUT + 3)
            e.label("L_done_6")
        self.who = ("comp", "load")
        self.stamp(13, "end")
        self.who = ("comp",)
        self.stamp_flush()
        e("s_endpgm")
        if r is Q:
            e.label("L_state")
            e("s_cmp_lg_u32 s%d, %d\ns_cbranch_scc1 L_oflag", sN, self.k0 + 3)
            self.stamp(8, "o0")
            self.ostage()
            self.stamp(9, "o1")
            e("s_branch %s", back)
            e.label("L_oflag")
            self.arrive(M_OCNT, C_O)
            self.stamp(10, "oflag")
            e("s_branch %s", back)

    def build(self):
        e = self.e
        self.entry()
        self.loader(F)
        self.loader(Q)
        e.label("L_matrix")
        e("s_bitcmp1_b32 s%d, 3\ns_cbranch_scc1 L_compute_Q", sI)
        self.compute(F)
        self.compute(Q)
        e.label("L_end")
        e("s_endpgm")
        body = fix_hazards(e.L)
        head = open("parallel_sum__linear_attn_block__dense_activation_silu__prompt.s.ref").read()
        head = head.split("; Override launch geometry")[0]
        out = [head.rstrip(),
               "; One persistent launch: 256 workgroups of 8 waves (4 matrix waves, 4 loader waves).",
               "; roleshift 6" if self.stamps else ";",
               "; @launch grid=(256,1,1) block=(512,1,1) lds=163840",
               '.amdgcn_target "amdgcn-amd-amdhsa--gfx950"', ".text", ".globl " + KNAME, ".p2align 8",
               ".type %s,@function" % KNAME, KNAME + ":"]
        out += [l if l.endswith(":") else "    " + l for l in body]
        out += ['.section .rodata,"a"', ".p2align 6", ".amdhsa_kernel " + KNAME,
                "  .amdhsa_next_free_vgpr 256", "  .amdhsa_next_free_sgpr 102", "  .amdhsa_accum_offset 256",
                "  .amdhsa_group_segment_fixed_size 0", "  .amdhsa_kernarg_size 72", "  .amdhsa_user_sgpr_count 2",
                "  .amdhsa_user_sgpr_kernarg_segment_ptr 1", "  .amdhsa_system_sgpr_workgroup_id_x 1", ".end_amdhsa_kernel"]
        return "\n".join(out) + "\n"


if __name__ == "__main__":
    open(sys.argv[1], "w").write(Gen(stamps="cyc" if "--cyc" in sys.argv else "--stamps" in sys.argv,
                                     opt=[a[2:] for a in sys.argv if a.startswith("-O")]).build())
```

```python
import re
import struct


def f2u(x):
    return struct.unpack("<I", struct.pack("<f", x))[0]


def vr(a, n=1):
    return "v%d" % a if n == 1 else "v[%d:%d]" % (a, a + n - 1)


def sr(a, n=1):
    return "s%d" % a if n == 1 else "s[%d:%d]" % (a, a + n - 1)


_REG = re.compile(r"^-?(?:abs\()?\|?([vsa])(?:(\d+)|\[(\d+):(\d+)\])\|?\)?$")
TRANS = re.compile(r"v_(exp|log|rcp|rsq|sqrt|sin|cos)_f32")


def regs_of(tok):
    tok = tok.strip()
    if tok == "vcc":
        return {("s", 106), ("s", 107)}
    if tok == "exec":
        return {("s", 126), ("s", 127)}
    if tok == "m0":
        return {("s", 124)}
    m = _REG.match(tok)
    if not m:
        return set()
    k = m.group(1)
    if m.group(2) is not None:
        return {(k, int(m.group(2)))}
    return {(k, i) for i in range(int(m.group(3)), int(m.group(4)) + 1)}


class Ins:
    __slots__ = ("text", "mn", "ops", "label", "defs", "uses", "kind", "srcc", "stdata", "addr_s", "ab")

    def __init__(self, text):
        self.text = text
        self.label = None
        self.defs = set()
        self.uses = set()
        self.srcc = set()
        self.ab = set()
        self.stdata = set()
        self.addr_s = set()
        t = text.split(";")[0].strip()
        if t.endswith(":"):
            self.label = t[:-1]
            self.mn = ""
            self.kind = "label"
            return
        if t.startswith(".") or not t:
            self.mn = ""
            self.kind = "dir"
            return
        parts = t.split(None, 1)
        self.mn = mn = parts[0]
        rest = parts[1] if len(parts) > 1 else ""
        rest = re.sub(r"\s\w+:\[[^\]]*\]", "", rest)
        ops = [o.strip() for o in rest.split(",")] if rest else []
        if ops:
            last = ops[-1].split()
            mods = last[1:]
            ops[-1] = last[0] if last else ""
        else:
            mods = []
        self.ops = ops
        R = [regs_of(o) for o in ops]
        if mn.startswith("v_mfma"):
            self.kind = "mfma"
            self.defs = R[0]
            self.ab = R[1] | R[2]
            self.srcc = R[3]
            self.uses = self.ab | self.srcc
        elif mn.startswith("v_"):
            self.kind = "valu"
            if mn.startswith("v_cmp"):
                self.defs = R[0]
                self.uses = set().union(*R[1:])
            elif mn.startswith("v_permlane") and "swap" in mn:
                self.defs = R[0] | R[1]
                self.uses = R[0] | R[1]
            else:
                self.defs = set(R[0])
                self.uses = set().union(*R[1:]) if len(R) > 1 else set()
                if mn.startswith(("v_add_co", "v_sub_co", "v_addc_co")):
                    self.defs |= R[1]
                if mn.startswith(("v_fmac", "v_dot2c", "v_writelane")) or "_dpp" in mn:
                    self.uses |= R[0]
                if mn.startswith("v_cndmask") and len(ops) == 3:
                    self.uses |= regs_of("vcc")
        elif mn.startswith("ds_"):
            self.kind = "ds"
            if mn.startswith(("ds_read", "ds_swizzle", "ds_bpermute")) or "_rtn_" in mn:
                self.defs = R[0]
                self.uses = set().union(*R[1:])
            else:
                self.uses = set().union(*R)
        elif mn.startswith(("buffer_", "global_")):
            self.kind = "vmem"
            is_lds = "lds" in mods or "load_lds" in mn
            allr = set().union(*R) if R else set()
            self.addr_s = {r for r in allr if r[0] == "s"}
            if is_lds:
                self.uses = allr | {("s", 124)}
                self.kind = "vmem_lds"
            elif "load" in mn:
                self.defs = R[0]
                self.uses = set().union(*R[1:])
            else:
                self.uses = allr
                if "x4" in mn or "x3" in mn:
                    self.stdata = R[0] if mn.startswith("buffer_") else R[1]
        elif mn.startswith("s_"):
            self.kind = "salu"
            nodef = ("s_cmp", "s_waitcnt", "s_barrier", "s_nop", "s_branch", "s_cbranch", "s_endpgm", "s_sleep",
                     "s_setprio", "s_bitcmp")
            if not mn.startswith(nodef) and R:
                self.defs = R[0]
                self.uses = set().union(*R[1:]) if len(R) > 1 else set()
            else:
                self.uses = set().union(*R) if R else set()
        else:
            raise ValueError("unknown instruction: " + text)

    def states(self):
        if self.kind in ("label", "dir"):
            return 0
        if self.mn == "s_nop":
            return int(self.ops[0], 0) + 1
        return 1


def mfma_passes(mn):
    return 8 if "32x32" in mn else 4


def need(p, c):
    n = 0
    vdef = {r for r in p.defs if r[0] in "va"}
    sdef = {r for r in p.defs if r[0] == "s"}
    if p.kind == "valu":
        if c.kind == "mfma" and vdef & c.uses:
            n = max(n, 2)
        if c.kind == "valu":
            if vdef & c.uses:
                if c.mn.startswith(("v_readlane", "v_readfirstlane")):
                    n = max(n, 1)
                if "_dpp" in c.mn or c.mn.startswith("v_permlane"):
                    n = max(n, 2)
                if TRANS.match(p.mn) and not TRANS.match(c.mn):
                    n = max(n, 1)
            if p.mn.startswith("v_dot") and (vdef & (c.uses | c.defs)):
                same_acc = c.mn == p.mn and not (vdef & set().union(*[regs_of(o) for o in c.ops[1:3]]))
                if not same_acc:
                    n = max(n, 3)
            if sdef & c.uses:
                n = max(n, 4 if c.mn.startswith(("v_readlane", "v_writelane")) else 2)
        if p.mn.startswith("v_dot") and c.kind in ("ds", "vmem", "vmem_lds", "mfma") and vdef & c.uses:
            n = max(n, 3)
        if c.kind in ("vmem", "vmem_lds") and sdef & c.uses:
            n = max(n, 5)
        if c.kind == "salu" and sdef & c.uses:
            n = max(n, 1)
    if p.kind == "mfma":
        ps = mfma_passes(p.mn)
        big = {4: 8, 8: 12}[ps]
        if c.kind == "mfma":
            if p.defs & c.ab:
                n = max(n, big)
            if p.defs & c.srcc and not (p.defs == c.srcc and mfma_passes(c.mn) == ps):
                n = max(n, {4: 6, 8: 10}[ps])
        elif c.kind in ("valu", "ds", "vmem", "vmem_lds"):
            if p.defs & (c.uses | c.defs):
                n = max(n, big)
            if c.kind == "valu" and p.srcc & c.defs:
                n = max(n, {4: 3, 8: 7}[ps])
    if p.kind == "salu" and ("s", 124) in p.defs and c.kind == "vmem_lds":
        n = max(n, 1)
    if p.stdata and p.stdata & c.defs:
        n = max(n, 2)
    return n


MAXD = 13


def fix_hazards(lines):
    ins = [Ins(l) for l in lines]
    while True:
        labels = {x.label: i for i, x in enumerate(ins) if x.label}
        jumps = {}
        for i, x in enumerate(ins):
            if x.mn.startswith(("s_branch", "s_cbranch")):
                jumps.setdefault(labels[x.ops[0]], []).append(i)

        def preds(i):
            out = []
            if i > 0 and ins[i - 1].mn not in ("s_branch", "s_endpgm"):
                out.append(i - 1)
            out += jumps.get(i, [])
            return out

        changed = False
        new = []
        for i, c in enumerate(ins):
            if c.kind not in ("label", "dir") and c.mn != "s_nop":
                short = 0
                stack = [(j, 0) for j in preds(i)]
                seen = {}
                while stack:
                    j, d = stack.pop()
                    if d >= MAXD or seen.get(j, 99) <= d:
                        continue
                    seen[j] = d
                    p = ins[j]
                    if p.kind not in ("label", "dir"):
                        short = max(short, need(p, c) - d)
                    stack += [(k, d + p.states()) for k in preds(j)]
                if short > 0:
                    new.append(Ins("s_nop %d" % (short - 1)))
                    changed = True
            new.append(c)
        ins = new
        if not changed:
            return [x.text for x in ins]


class Asm:
    def __init__(self):
        self.L = []
        self.nlab = 0

    def __call__(self, fmt, *a):
        t = fmt % a if a else fmt
        for l in t.split("\n"):
            l = l.strip()
            if l:
                self.L.append(l)

    def label(self, name):
        self.L.append(name + ":")

    def newlabel(self, stem):
        self.nlab += 1
        return "L_%s_%d" % (stem, self.nlab)


class VmTrack:
    def __init__(self, e):
        self.e = e
        self.q = []

    def issue(self, tag, fmt, *a):
        self.e(fmt, *a)
        self.q.append(tag)

    def wait(self, tag):
        idx = [i for i, t in enumerate(self.q) if t == tag]
        if not idx:
            return
        n = len(self.q) - 1 - idx[-1]
        assert n <= 63, n
        self.e("s_waitcnt vmcnt(%d)", n)
        self.q = self.q[idx[-1] + 1:]

    def wait_all(self):
        self.e("s_waitcnt vmcnt(0)")
        self.q = []


def interleave(main, fill, start=0, every=1):
    out = []
    fi = 0
    for i, m in enumerate(main):
        out.append(m)
        if i >= start and (i - start) % every == 0 and fi < len(fill):
            out.append(fill[fi])
            fi += 1
    out += fill[fi:]
    return out


_PROMOTE = re.compile(r"^v_(exp_f32|rcp_f32|rsq_f32|sqrt_f32|max_f32|min_u32|mul_f32|add_f32|sub_f32|add_u32|sub_u32|subrev_u32|"
                      r"mov_b32|and_b32|or_b32|xor_b32|lshlrev_b32|lshrrev_b32|mul_u32_u24|cndmask_b32|max_u32)$")


def sizes_of(lines):
    import subprocess
    import tempfile
    with tempfile.TemporaryDirectory() as d:
        open(d + "/a.s", "w").write('.amdgcn_target "amdgcn-amd-amdhsa--gfx950"\n.text\n' + "\n".join(lines) + "\n")
        subprocess.run(["clang", "-x", "assembler", "-target", "amdgcn-amd-amdhsa", "-mcpu=gfx950",
                        "-c", d + "/a.s", "-o", d + "/a.o"], check=True)
        dis = subprocess.run(["llvm-objdump", "-d", "--mcpu=gfx950", d + "/a.o"],
                             capture_output=True, text=True, check=True).stdout
    got = [len(m.group(1).split()) * 4 for m in re.finditer(r"//\s+[0-9A-F]+:\s+([0-9A-F ]+)$", dis, re.M)]
    out, it = [], iter(got)
    for l in lines:
        out.append(0 if Ins(l).kind in ("label", "dir") else next(it))
    return out


def align_runs(lines, min_nop_run=5):
    size = sizes_of(lines)
    ins = [Ins(l) for l in lines]
    out, off = [], 0
    prev = None
    for i, l in enumerate(lines):
        if size[i] == 8 and off % 8 and ins[i].kind == "valu":
            run, j = 0, i
            while j < len(lines) and (size[j] == 0 or (size[j] == 8 and ins[j].kind == "valu")):
                run += size[j] == 8
                j += 1
            if run >= 2 and prev is not None and prev[1] == 4 and _PROMOTE.match(Ins(out[prev[0]]).mn):
                mn = Ins(out[prev[0]]).mn
                out[prev[0]] = out[prev[0]].replace(mn, mn + "_e64", 1)
                off += 4
            elif run >= min_nop_run:
                out.append("s_nop 0")
                off += 4
        out.append(l)
        if size[i]:
            prev = (len(out) - 1, size[i])
        off += size[i]
    return out
```
